```python
import torch

def _softmax(x, axis=-1):
    return torch.softmax(x, dim=axis)

def _gelu(x):
    return torch.nn.functional.gelu(x, approximate='tanh')

def _silu(x):
    return torch.nn.functional.silu(x)

def _sigmoid(x):
    return torch.sigmoid(x)

def _layernorm(x, axis=-1, eps=1e-05):
    m = x.mean(dim=axis, keepdim=True)
    v = x.var(dim=axis, keepdim=True, unbiased=False)
    return (x - m) / torch.sqrt(v + eps)

def _scatter_add(tgt, idx, src, axis=0):
    return tgt.clone().index_add_(axis, idx, src)

def _segment_sum(src, seg, n):
    out = torch.zeros((n,) + src.shape[1:], dtype=src.dtype)
    return out.index_add_(0, seg, src)

def _pad(x, pw):
    flat = tuple((v for pair in reversed(pw) for v in pair))
    return torch.nn.functional.pad(x, flat)
kernel_name = 'adaLN_cond__sliding_block_cached__glu_gated_swiglu__prompt'

def setup_inputs():

    _w = lambda a: (lambda t: t.to(torch.bfloat16) if t.is_floating_point() else t)(torch.as_tensor(a))

    def _A_setup():
        B, Sq, D = (1, 2048, 640)
        Hq, Hkv, Sk, Dh = (32, 32, 2048, 192)
        assert Hq % Hkv == 0, (Hq, Hkv)
        return {'x': _w((lambda *s: torch.randn(*s, dtype=torch.bfloat16) * 0.05)(B, Sq, D)), 'k_cache': _w((lambda *s: torch.randn(*s, dtype=torch.bfloat16) * 1.6)(B, Hkv, Sk, Dh)), 'v_cache': _w((lambda *s: torch.randn(*s, dtype=torch.bfloat16) * 0.8)(B, Hkv, Sk, Dh)), 'wq': _w((lambda *s: torch.randn(*s, dtype=torch.bfloat16) * 1.6)(D, Hq * Dh) * D ** (-0.5)), 'wo': _w((lambda *s: torch.randn(*s, dtype=torch.bfloat16) * 0.8)(Hq * Dh, D) * (Hq * Dh) ** (-0.5))}
    _A_in = _A_setup()

    def _B_setup():
        B, S, D, F = (1, 2048, 640, 1536)
        return {'x': _w((lambda *s: torch.randn(*s, dtype=torch.bfloat16) * 0.05)(B, S, D)), 'w1': _w((lambda *s: torch.randn(*s, dtype=torch.bfloat16) * 0.4)(D, F) * (2.0 / D) ** 0.5), 'w3': _w((lambda *s: torch.randn(*s, dtype=torch.bfloat16) * 0.4)(D, F) * (2.0 / D) ** 0.5), 'w2': _w((lambda *s: torch.randn(*s, dtype=torch.bfloat16) * 0.4)(F, D) * (2.0 / F) ** 0.5)}
    _B_in = _B_setup()
    return {'A_x': _A_in['x'], 'A_k_cache': _A_in['k_cache'], 'A_v_cache': _A_in['v_cache'], 'A_wq': _A_in['wq'], 'A_wo': _A_in['wo'], 'B_x': _B_in['x'], 'B_w1': _B_in['w1'], 'B_w3': _B_in['w3'], 'B_w2': _B_in['w2'], 'c': _w((lambda *s: torch.randn(*s, dtype=torch.bfloat16) * 0.2)(1, 640) * 8.0), 'w_mod': _w((lambda *s: torch.randn(*s, dtype=torch.bfloat16) * 0.2)(640, 6 * 640) * 640 ** (-0.5) * 8.0)}

def reference(A_x, A_k_cache, A_v_cache, A_wq, A_wo, B_x, B_w1, B_w3, B_w2, c, w_mod):

    def _A_ref(x, k_cache, v_cache, wq, wo):
        B, Sq, D = x.shape
        Hq, Dh = (32, 192)
        Hkv, Sk = (k_cache.shape[1], k_cache.shape[2])
        W = min(4096, max(256, Sk // 4))
        rep = Hq // Hkv
        q = (lambda x, *d: x.permute(*d))((x @ wq).reshape(B, Sq, Hq, Dh), 0, 2, 1, 3)
        k = (lambda x, n, axis: torch.repeat_interleave(x, n, dim=axis))(k_cache[:, :, Sk - W:, :], rep, axis=1)
        v = (lambda x, n, axis: torch.repeat_interleave(x, n, dim=axis))(v_cache[:, :, Sk - W:, :], rep, axis=1)
        scores = torch.einsum('bhqd,bhkd->bhqk', q, k) * Dh ** (-0.5)
        p = _softmax(scores, axis=-1)
        o = torch.einsum('bhqk,bhkd->bhqd', p, v)
        return (lambda x, *d: x.permute(*d))(o, 0, 2, 1, 3).reshape(B, Sq, Hq * Dh) @ wo

    def _B_ref(x, w1, w3, w2):
        gate = torch.einsum('bsd,df->bsf', x, w1)
        up = torch.einsum('bsd,df->bsf', x, w3)
        h = _silu(gate) * up
        out = torch.einsum('bsf,fd->bsd', h, w2)
        return out
    x = A_x
    mod = (_silu(c) @ w_mod).reshape(c.shape[0], 6, 1, -1)
    sa, ca, ga, sb, cb, gb = (mod[:, 0].clone(), mod[:, 1].clone(), mod[:, 2].clone(), mod[:, 3].clone(), mod[:, 4].clone(), mod[:, 5].clone())
    h = _layernorm(x, axis=-1) * (1 + ca) + sa
    x = x + ga * _A_ref(h, A_k_cache, A_v_cache, A_wq, A_wo)
    h = _layernorm(x, axis=-1) * (1 + cb) + sb
    x = x + gb * _B_ref(h, B_w1, B_w3, B_w2)
    return x
```

```python
import re

_REG = re.compile(r'^(-|\|)?(abs\()?([vas])(\d+)\)?\|?$')
_RNG = re.compile(r'^([vas])\[(\d+):(\d+)\]$')


def regs_of(tok):
    tok = tok.strip()
    if tok in ('vcc', 'vcc_lo', 'vcc_hi'):
        return [('vcc', 0)]
    if tok == 'exec':
        return [('exec', 0)]
    if tok == 'm0':
        return [('m0', 0)]
    m = _RNG.match(tok.lstrip('-'))
    if m:
        return [(m.group(1), i) for i in range(int(m.group(2)), int(m.group(3)) + 1)]
    m = _REG.match(tok)
    if m:
        return [(m.group(3), int(m.group(4)))]
    return []


def split_ops(rest):
    ops, depth, cur = [], 0, ''
    for ch in rest:
        if ch == '[':
            depth += 1
        elif ch == ']':
            depth -= 1
        if ch == ',' and depth == 0:
            ops.append(cur.strip())
            cur = ''
        else:
            cur += ch
    if cur.strip():
        ops.append(cur.strip())
    mods = ''
    if ops:
        parts = ops[-1].split(None, 1)
        if len(parts) == 2:
            ops[-1], mods = parts
    return ops, mods


TRANS = ('v_exp_f32', 'v_log_f32', 'v_rcp_f32', 'v_rsq_f32', 'v_sqrt_f32', 'v_sin_f32', 'v_cos_f32')
S_NODST = ('s_cmp', 's_waitcnt', 's_barrier', 's_branch', 's_cbranch', 's_nop', 's_sleep', 's_setprio',
           's_endpgm', 's_bitcmp')


class I:
    __slots__ = ('text', 'kind', 'rd', 'wr', 'tag', 'site', 'need', 'mn', 'cval', 'passes', 'srcc')

    def __init__(self, text, tag=None):
        self.text = text
        self.tag = tag
        self.site = None
        self.need = None
        self.cval = None
        self.passes = 0
        self.srcc = []
        t = text.strip()
        self.rd, self.wr = [], []
        if t.endswith(':') or t.startswith('.') or t.startswith(';') or t == '':
            self.kind, self.mn = 'label', ''
            return
        parts = t.split(None, 1)
        mn = parts[0]
        self.mn = mn
        ops, mods = split_ops(parts[1]) if len(parts) > 1 else ([], '')
        R = lambda k: regs_of(ops[k]) if k < len(ops) else []
        allr = lambda k0: [r for k in range(k0, len(ops)) for r in regs_of(ops[k])]
        if mn.startswith('v_mfma'):
            self.kind = 'mfma'
            self.wr = R(0)
            self.rd = R(1) + R(2) + R(3)
            self.srcc = R(3)
            self.passes = 8 if '32x32' in mn else 4
        elif mn.startswith('v_cmp'):
            self.kind = 'valu'
            self.wr = R(0)
            self.rd = allr(1)
        elif mn.startswith('v_permlane') and 'swap' in mn:
            self.kind = 'valu'
            self.wr = R(0) + R(1)
            self.rd = R(0) + R(1)
        elif mn.startswith('v_readfirstlane') or mn.startswith('v_readlane'):
            self.kind = 'valu'
            self.wr = R(0)
            self.rd = allr(1)
        elif mn.startswith('v_cndmask'):
            self.kind = 'valu'
            self.wr = R(0)
            self.rd = allr(1) + ([('vcc', 0)] if len(ops) == 3 else [])
        elif mn.startswith(('v_add_co', 'v_sub_co', 'v_addc_co', 'v_subb_co')):
            self.kind = 'valu'
            self.wr = R(0) + R(1)
            self.rd = allr(2)
        elif mn.startswith('v_'):
            base = mn.replace('_e32', '').replace('_e64', '')
            self.kind = 'trans' if base in TRANS else 'valu'
            self.wr = R(0)
            self.rd = allr(1)
            if mn.startswith(('v_fmac', 'v_mac', 'v_dot2c', 'v_pk_fmac')) or '_dpp' in mn or 'v_writelane' in mn:
                self.rd += R(0)
        elif mn.startswith('ds_read') or mn.startswith('ds_bpermute') or mn.startswith('ds_swizzle'):
            self.kind = 'ds'
            self.wr = R(0)
            self.rd = allr(1)
        elif mn.startswith('ds_write'):
            self.kind = 'ds'
            self.rd = allr(0)
        elif mn.startswith('buffer_load') or mn.startswith('global_load'):
            if re.search(r'\blds\b', mods) or mn.startswith('global_load_lds'):
                self.kind = 'dma'
                self.rd = allr(0) + [('m0', 0)]
            else:
                self.kind = 'vmld'
                self.wr = R(0)
                self.rd = allr(1)
        elif mn.startswith('buffer_store') or mn.startswith('global_store'):
            self.kind = 'vmst'
            self.rd = allr(0)
        elif mn.startswith('buffer_atomic') or mn.startswith('global_atomic'):
            self.kind = 'vmst'
            self.rd = allr(0)
            if 'sc0' in mods:
                self.kind = 'vmld'
                self.wr = R(0)
        elif mn.startswith('buffer_wbl2') or mn.startswith('buffer_inv'):
            self.kind = 'vmst'
        elif mn.startswith('s_load') or mn.startswith('s_memtime') or mn.startswith('s_memrealtime'):
            self.kind = 'smem'
            self.wr = R(0)
            self.rd = allr(1)
        elif mn == 's_waitcnt':
            self.kind = 'wait'
        elif mn == 's_barrier':
            self.kind = 'barrier'
        elif mn == 's_nop':
            self.kind = 'nop'
            self.cval = int(ops[0])
        elif mn.startswith('s_branch') or mn.startswith('s_cbranch') or mn == 's_endpgm':
            self.kind = 'branch'
            if 'vcc' in mn:
                self.rd = [('vcc', 0)]
            if 'scc' in mn:
                self.rd = [('scc', 0)]
            if 'exec' in mn:
                self.rd = [('exec', 0)]
        elif mn.startswith('s_'):
            self.kind = 'salu'
            if mn.startswith(S_NODST):
                self.rd = allr(0)
                if mn.startswith(('s_cmp', 's_bitcmp')):
                    self.wr = [('scc', 0)]
            else:
                self.wr = R(0)
                self.rd = allr(1)
                if mn.startswith(('s_add', 's_sub', 's_lshl', 's_lshr', 's_and', 's_or', 's_xor', 's_min', 's_max',
                                  's_ashr', 's_bfe', 's_not', 's_andn2')):
                    self.wr = self.wr + [('scc', 0)]
                if mn.startswith(('s_addc', 's_subb', 's_cselect', 's_cmov')):
                    self.rd = self.rd + [('scc', 0)]
                if 'saveexec' in mn:
                    self.wr = self.wr + [('exec', 0)]
                    self.rd = self.rd + [('exec', 0)]
                if mn.startswith(('s_addk', 's_mulk')):
                    self.rd = self.rd + R(0)
        else:
            raise ValueError('cannot parse: ' + text)

    def __repr__(self):
        return self.text


def wait_site(vm=False, lgkm=False, need=None):
    i = I('s_waitcnt SITE_PLACEHOLDER')
    i.kind = 'site'
    i.site = {'vm': vm or need is not None, 'lgkm': lgkm}
    i.need = need
    return i


class Prog:
    def __init__(self):
        self.items = []

    def e(self, x, tag=None):
        if isinstance(x, str):
            for ln in x.split('\n'):
                if ln.strip():
                    self.items.append(I(ln.strip(), tag))
        elif isinstance(x, I):
            self.items.append(x)
        else:
            for y in x:
                self.e(y, tag)
        return self

    def loop(self, bodies):
        t0 = [i.text for i in bodies[0]]
        for k, b in enumerate(bodies[1:], 1):
            tk = [i.text for i in b]
            if tk != t0:
                for a, c in zip(t0, tk):
                    if a != c:
                        raise ValueError(f'loop body {k} differs: {a!r} vs {c!r}')
                raise ValueError(f'loop body {k} differs in length {len(t0)} vs {len(tk)}')
        self.items.append(('loop', bodies))

    def trace(self):
        out = []
        sid = 0
        for it in self.items:
            if isinstance(it, I):
                out.append((sid, it))
                sid += 1
            else:
                bodies = it[1]
                for b in bodies:
                    for k, x in enumerate(b):
                        out.append((sid + k, x))
                sid += len(bodies[0])
        return out

    def static(self):
        out = []
        for it in self.items:
            if isinstance(it, I):
                out.append(it)
            else:
                out.extend(it[1][0])
        return out

    def resolve(self, verbose=False):
        tr = self.trace()
        n = len(tr)
        VM = ('vmld', 'vmst', 'dma')
        res = {}
        for counter in ('vm', 'lgkm'):
            q = []
            need_static = {}
            for rounds in range(3):
                q = []
                new_need = {}
                for pos in range(n):
                    sid, ins = tr[pos]
                    if ins.kind == 'site' and ins.site[counter]:
                        regs = set()
                        p2 = pos + 1
                        while p2 < n:
                            j = tr[p2][1]
                            if j.kind == 'site' and j.site[counter]:
                                break
                            if j.kind == 'wait' and self._fixed_wait(j, counter) == 0:
                                break
                            regs.update(j.rd)
                            regs.update(j.wr)
                            p2 += 1
                        N = None
                        for k in range(len(q) - 1, -1, -1):
                            op = q[k]
                            hit = bool(regs.intersection(op.wr))
                            if counter == 'vm' and ins.need is not None and ins.need(op):
                                hit = True
                            if hit:
                                N = len(q) - 1 - k
                                break
                        if N is not None:
                            new_need[sid] = min(new_need.get(sid, 1 << 30), N)
                        use = need_static.get(sid, N) if rounds else N
                        if use is not None:
                            while len(q) > use:
                                q.pop(0)
                    elif ins.kind == 'wait':
                        f = self._fixed_wait(ins, counter)
                        if f is not None:
                            while len(q) > f:
                                q.pop(0)
                    elif counter == 'vm' and ins.kind in VM:
                        q.append(ins)
                    elif counter == 'lgkm' and ins.kind in ('ds', 'smem'):
                        q.append(ins)
                if new_need == need_static:
                    break
                for s, v in new_need.items():
                    need_static[s] = min(need_static.get(s, 1 << 30), v) if rounds else v
            for s, v in need_static.items():
                res.setdefault(s, {})[counter] = v
        self.site_res = res
        for sid, ins in self.trace():
            if ins.kind == 'site':
                r = res.get(sid, {})
                parts = []
                if 'vm' in r:
                    parts.append(f'vmcnt({min(r["vm"], 63)})')
                if 'lgkm' in r:
                    parts.append(f'lgkmcnt({min(r["lgkm"], 15)})')
                ins.text = ('s_waitcnt ' + ' '.join(parts)) if parts else ''
        return res

    @staticmethod
    def _fixed_wait(ins, counter):
        m = re.search(r'vmcnt\((\d+)\)' if counter == 'vm' else r'lgkmcnt\((\d+)\)', ins.text)
        return int(m.group(1)) if m else None

    def verify(self):
        tr = [(s, i) for s, i in self.trace()]
        errs = []
        qv, ql = [], []
        st = 0
        lastw = {}
        lastc = {}
        laststore = {}
        for pos, (sid, ins) in enumerate(tr):
            k = ins.kind
            if k == 'label':
                continue
            if k == 'site' or k == 'wait':
                if ins.text == '':
                    continue
                f = self._fixed_wait(ins, 'vm')
                if f is not None:
                    while len(qv) > f:
                        qv.pop(0)
                f = self._fixed_wait(ins, 'lgkm')
                if f is not None:
                    while len(ql) > f:
                        ql.pop(0)
                st += 1
                continue
            touched = set(ins.rd) | set(ins.wr)
            for q, nm in ((qv, 'vm'), (ql, 'lgkm')):
                for op in q:
                    if touched.intersection(op.wr):
                        errs.append(f'[{pos}] {ins.text}  touches pending {nm} result of  {op.text}')
            if len(qv) > 63 + 1 and k in ('vmld', 'vmst', 'dma'):
                pass
            def dist(s0):
                return st - s0 - 1
            isvalu = k in ('valu', 'trans')
            for r in ins.rd:
                if r in lastw:
                    s0, p = lastw[r]
                    d = dist(s0)
                    req = 0
                    if p.kind == 'mfma':
                        if k == 'mfma':
                            if r in ins.srcc and set(ins.srcc) == set(p.wr) and r not in [x for x in ins.rd if x not in ins.srcc]:
                                req = 0
                            elif r in ins.srcc:
                                req = {4: 6, 8: 10}[p.passes]
                            else:
                                req = {4: 8, 8: 12}[p.passes]
                        elif isvalu or k in ('ds', 'vmst', 'vmld', 'dma'):
                            req = {4: 8, 8: 12}[p.passes]
                    elif p.kind in ('valu', 'trans'):
                        if k == 'mfma' and r[0] in 'va':
                            req = 2
                        elif 'permlane' in ins.mn and r[0] == 'v':
                            req = 2
                        elif ('readfirstlane' in ins.mn or 'readlane' in ins.mn) and r[0] == 'v':
                            req = 1
                        elif '_dpp' in ins.mn and r[0] == 'v':
                            req = 2
                        elif p.kind == 'trans' and k == 'valu' and r[0] == 'v':
                            req = 1
                        elif r[0] in ('s', 'vcc') and isvalu:
                            req = 2
                        elif r[0] == 's' and k in ('vmld', 'vmst', 'dma'):
                            req = 5
                        elif r[0] in ('s',) and k in ('salu', 'branch'):
                            req = 1
                    elif p.kind == 'salu' and r[0] == 'm0' and k == 'dma':
                        req = 1
                    if d < req:
                        errs.append(f'[{pos}] hazard RAW {r}: {p.text}  ->  {ins.text}  dist {d} < {req}')
            for r in ins.wr:
                if r in lastw:
                    s0, p = lastw[r]
                    if p.kind == 'mfma' and (isvalu or k in ('ds', 'vmld')):
                        req = {4: 8, 8: 12}[p.passes]
                        if dist(s0) < req:
                            errs.append(f'[{pos}] hazard WAW {r}: {p.text}  ->  {ins.text}  dist {dist(s0)} < {req}')
                if isvalu and r in lastc:
                    s0, p = lastc[r]
                    req = {4: 3, 8: 7}[p.passes]
                    if dist(s0) < req:
                        errs.append(f'[{pos}] hazard WAR srcC {r}: {p.text}  ->  {ins.text}')
                if isvalu and r in laststore and dist(laststore[r]) < 2:
                    errs.append(f'[{pos}] hazard store-data WAR {r}: {ins.text}')
            for r in ins.wr:
                lastw[r] = (st, ins)
            if k == 'mfma':
                for r in ins.srcc:
                    lastc[r] = (st, ins)
            if k == 'vmst' and ('x4' in ins.mn or 'x3' in ins.mn):
                for r in ins.rd:
                    if r[0] in 'va':
                        laststore[r] = st
            if k in ('vmld', 'vmst', 'dma'):
                qv.append(ins)
            if k in ('ds', 'smem'):
                ql.append(ins)
            st += (ins.cval + 1) if k == 'nop' else 1
        return errs

    def text(self):
        out = []
        for i in self.static():
            if i.text == '':
                continue
            if i.kind == 'label':
                out.append(i.text)
            else:
                out.append('  ' + i.text)
        return '\n'.join(out)


class Gap:
    __slots__ = ('pre', 'ds', 'valu', 'exp', 'vm')

    def __init__(self):
        self.pre, self.ds, self.valu, self.exp, self.vm = [], None, [], None, None

    def can(self, cls):
        if cls == 'pre':
            if self.vm is not None:
                return False
            light = self.ds is None and self.exp is None and len(self.valu) <= 1
            return len(self.pre) < (2 if light else 1)
        if self.vm is not None:
            return False
        heavy_pre = len(self.pre) >= 2
        if cls == 'vm':
            return not self.pre and self.ds is None and self.exp is None and not self.valu
        if cls == 'ds':
            return self.ds is None and self.exp is None and len(self.valu) <= 1 and not heavy_pre
        if cls == 'exp':
            return self.ds is None and self.exp is None and not self.valu and not heavy_pre
        if cls == 'valu':
            if self.exp is not None:
                return False
            if self.ds is not None:
                return len(self.valu) < 1
            return len(self.valu) < (1 if heavy_pre else 2)
        raise ValueError(cls)

    def put(self, cls, ins):
        assert self.can(cls), (cls, ins.text, self.dump())
        if cls == 'pre':
            self.pre.append(ins)
        elif cls == 'vm':
            self.vm = ins
        elif cls == 'ds':
            self.ds = ins
        elif cls == 'exp':
            self.exp = ins
        else:
            self.valu.append(ins)

    def dump(self):
        return [x.text for x in self.items()]

    def items(self):
        out = list(self.pre)
        if self.ds is not None:
            out.append(self.ds)
        if self.vm is not None:
            out.append(self.vm)
        if self.exp is not None:
            out.append(self.exp)
        out.extend(self.valu)
        return out


class Seg:
    def __init__(self, mfmas):
        self.mf = mfmas
        self.n = len(mfmas)
        self.gaps = [Gap() for _ in range(self.n)]

    def put(self, g, cls, ins):
        if isinstance(ins, str):
            ins = I(ins)
        self.gaps[g % self.n].put(cls, ins)
        return ins

    def can(self, g, cls):
        return self.gaps[g % self.n].can(cls)

    def find(self, lo, hi, cls, step=1):
        for g in range(lo, hi, step):
            if self.can(g, cls):
                return g
        return None

    def place(self, lo, hi, cls, ins):
        g = self.find(lo, hi, cls)
        if g is None:
            raise RuntimeError(f'no gap for {ins} cls {cls} in [{lo},{hi})')
        self.put(g, cls, ins)
        return g

    def emit(self, skip_mfma=None):
        out = []
        for i in range(self.n):
            if self.mf[i] is not None and not (skip_mfma and skip_mfma(i)):
                out.append(self.mf[i])
            out.extend(self.gaps[i].items())
        return out
```

```python
from asmlib import I, Prog, Seg, wait_site

KA = dict(x=0, k=8, v=16, wq=24, wo=32, bx=40, w1=48, w3=56, w2=64, c=72, wmod=80, out=88, dbg=96, ws=104)

WS_MOD = 0x0
WS_H = 0x10000
WS_O = 0x300000
WS_PART = 0x1B00000
WS_X1 = 0x2F00000
WS_H2 = 0x3200000
WS_HH = 0x3500000
WS_FLAGS = 0x3C00000
SZ_ACT = 128 * 20 * 1024
SZ_O = 128 * 192 * 1024
SZ_HH = 128 * 48 * 1024

SZ_X = 2048 * 640 * 2
SZ_KV = 32 * 2048 * 192 * 2
SZ_WQ = 640 * 6144 * 2
SZ_WO = SZ_WQ
SZ_W1 = 640 * 1536 * 2
SZ_WMOD = 640 * 3840 * 2


def v(a, n=1):
    return f'v{a}' if n == 1 else f'v[{a}:{a + n - 1}]'


def a(x, n=1):
    return f'a{x}' if n == 1 else f'a[{x}:{x + n - 1}]'


def s(x, n=1):
    return f's{x}' if n == 1 else f's[{x}:{x + n - 1}]'


def srd(p, d, base, size, off=0):
    if off:
        p.e(f's_add_u32 s{d}, s{base}, {off}')
        p.e(f's_addc_u32 s{d + 1}, s{base + 1}, 0')
    else:
        p.e(f's_mov_b32 s{d}, s{base}')
        p.e(f's_mov_b32 s{d + 1}, s{base + 1}')
    p.e(f's_mov_b32 s{d + 2}, {size}')
    p.e(f's_mov_b32 s{d + 3}, 0x20000')


def kernel_head(name):
    return f'''.globl {name}
.p2align 8
.type {name},@function
{name}:'''


def kernel_desc(name, vgpr=512, accum=256, sgpr=102):
    return f'''.p2align 6
.amdhsa_kernel {name}
  .amdhsa_next_free_vgpr {vgpr}
  .amdhsa_next_free_sgpr {sgpr}
  .amdhsa_accum_offset {accum}
  .amdhsa_group_segment_fixed_size 0
  .amdhsa_kernarg_size 112
  .amdhsa_user_sgpr_count 2
  .amdhsa_user_sgpr_kernarg_segment_ptr 1
  .amdhsa_system_sgpr_workgroup_id_x 1
.end_amdhsa_kernel'''


def skip(ins_list):
    for i in ins_list:
        i.kind = 'label'
        i.rd, i.wr = [], []
    return ins_list
```

```python
from common import *

SLOT = 24576
NS = 6
RING = SLOT * NS

S_A, S_B, S_K, S_V, S_H, S_O = 4, 8, 12, 16, 20, 24
sOffA, sOffB, sInc, sM0, sDcnt, sDelta, sRcnt, sCnt, sH, sHead, sRb, sW, sT0, sT1 = range(28, 42)
sWrap, sStep = 42, 43
sPtr = 44

vQ, vS, vP, vNM, vL, vT = 0, 96, 128, 160, 176, 180
vA, vB = 192, 195
vR = 198
vV = 200
vH = 204
vKs, vVs = 208, 211
vKr = 214
vTid, vLane, vX = 216, 217, 218
aK, aV = 192, 224

LEAD = 16
DELTA_M = 40.0


def acc(dt, qg):
    return ((qg * 6 + (dt >> 1)) * 2 + (dt & 1)) * 4


def Qf(qg, ks):
    return vQ + (qg * 6 + ks) * 4


def Sr(t, qg):
    return vS + (t * 4 + qg) * 4


def Pr(par, qg):
    return vP + par * 16 + qg * 4


def Or(dt, qg):
    return (dt * 4 + qg) * 4


def dma(vreg, srd_, soff, piece, stage):
    return I(f'buffer_load_dwordx4 v{vreg + piece}, s[{srd_}:{srd_ + 3}], s{soff} offen offset:{piece * 1024} lds' if piece else
             f'buffer_load_dwordx4 v{vreg}, s[{srd_}:{srd_ + 3}], s{soff} offen lds', tag=('dma', stage))


def need_stage(st):
    return lambda op: op.tag is not None and op.tag[0] == 'dma' and op.tag[1] <= st


def adv_chain(cnt, out, wrapval, stepval):
    return [f's_add_u32 s{cnt}, s{cnt}, 1',
            f's_cmp_eq_u32 s{cnt}, {NS}',
            f's_cselect_b32 s{out}, s{sWrap}, s{sStep}',
            f's_cselect_b32 s{cnt}, 0, s{cnt}']


def m0_advance():
    return adv_chain(sDcnt, sT0, -(RING - SLOT), SLOT) + [f's_add_u32 s{sM0}, s{sM0}, s{sT0}']


def place_chain(seg, chain, lo, hi):
    g = lo
    for c in chain:
        g = seg.find(g, hi, 'pre')
        if g is None:
            raise RuntimeError('no room for salu chain')
        seg.put(g, 'pre', c)
        g += 1
    return g


def prologue(p, Pn):
    p.e(f's_cmp_ge_u32 s2, 256')
    p.e(f's_cbranch_scc1 {Pn}_end')
    p.e(f's_load_dwordx2 s[{sPtr}:{sPtr + 1}], s[0:1], {KA["wq"]}')
    p.e(f's_load_dwordx2 s[{sPtr + 2}:{sPtr + 3}], s[0:1], {KA["k"]}')
    p.e(f's_load_dwordx2 s[{sPtr + 4}:{sPtr + 5}], s[0:1], {KA["v"]}')
    p.e(f's_load_dwordx2 s[{sPtr + 6}:{sPtr + 7}], s[0:1], {KA["ws"]}')
    p.e(f'v_mov_b32 v{vTid}, v0')
    p.e(f'v_and_b32 v{vLane}, 63, v0')
    p.e(f'v_lshrrev_b32 v{vX}, 6, v0')
    p.e('s_nop 0')
    p.e(f'v_readfirstlane_b32 s{sW}, v{vX}')
    p.e(f's_and_b32 s{sT0}, s2, 7')
    p.e(f's_lshl_b32 s{sT0}, s{sT0}, 2')
    p.e(f's_bfe_u32 s{sT1}, s2, 0x20003')
    p.e(f's_add_u32 s{sHead}, s{sT0}, s{sT1}')
    p.e(f's_lshr_b32 s{sRb}, s2, 5')
    x0, x1, x2, x3, x4, x5 = (vX + k for k in range(6))
    p.e(f's_mul_i32 s{sT0}, s{sW}, 192')
    p.e(f's_movk_i32 s{sT1}, 2731')
    for pc in range(3):
        p.e(f'v_add_u32 v{x0}, s{sT0}, v{vLane}')
        if pc:
            p.e(f'v_add_u32 v{x0}, {64 * pc}, v{x0}')
        p.e(f'v_mul_u32_u24 v{x1}, s{sT1}, v{x0}')
        p.e(f'v_lshrrev_b32 v{x1}, 16, v{x1}')
        p.e(f'v_mul_u32_u24 v{x2}, 24, v{x1}')
        p.e(f'v_sub_u32 v{x2}, v{x0}, v{x2}')
        p.e(f'v_and_b32 v{x3}, 24, v{x2}')
        p.e(f'v_and_b32 v{x2}, 7, v{x2}')
        p.e(f'v_and_b32 v{x4}, 2, v{x1}')
        p.e(f'v_lshlrev_b32 v{x4}, 1, v{x4}')
        p.e(f'v_xor_b32 v{x4}, v{x4}, v{x2}')
        p.e(f'v_or_b32 v{x4}, v{x4}, v{x3}')
        p.e(f'v_lshlrev_b32 v{x4}, 4, v{x4}')
        p.e(f'v_mul_u32_u24 v{x5}, 0x3000, v{x1}')
        p.e(f'v_add_u32 v{x4}, v{x4}, v{x5}')
        if pc:
            p.e(f'v_subrev_u32 v{x4}, {1024 * pc}, v{x4}')
        p.e(f'v_mov_b32 v{vA + pc}, v{x4}')
        p.e(f'v_mov_b32 v{vB + pc}, v{x4}')
        p.e(f'v_mul_u32_u24 v{x5}, 0x180, v{x1}')
        p.e(f'v_add_u32 v{x5}, {2048 - 1024 * pc}, v{x5}')
        p.e(f'v_bfe_u32 v{x4}, v{x1}, 1, 3')
        p.e(f'v_xor_b32 v{x4}, v{x4}, v{x2}')
        p.e(f'v_or_b32 v{x4}, v{x4}, v{x3}')
        p.e(f'v_lshl_add_u32 v{vKs + pc}, v{x4}, 4, v{x5}')
        p.e(f'v_and_b32 v{x4}, 6, v{x1}')
        p.e(f'v_xor_b32 v{x4}, v{x4}, v{x2}')
        p.e(f'v_or_b32 v{x4}, v{x4}, v{x3}')
        p.e(f'v_lshl_add_u32 v{vVs + pc}, v{x4}, 4, v{x5}')
    for qg in range(4):
        p.e(f'v_lshlrev_b32 v{vH + qg}, 4, v{vLane}')
        if qg:
            p.e(f'v_add_u32 v{vH + qg}, {qg * 20480}, v{vH + qg}')
    p.e('s_waitcnt lgkmcnt(0)')
    srd(p, S_A, sPtr, SZ_WQ)
    srd(p, S_B, sPtr, SZ_WQ)
    srd(p, S_K, sPtr + 2, SZ_KV)
    srd(p, S_V, sPtr + 4, SZ_KV)
    p.e(f's_add_u32 s{sT0}, s{sHead}, 1')
    p.e(f's_mul_i32 s{S_K + 2}, s{sT0}, 786432')
    p.e(f's_mov_b32 s{S_V + 2}, s{S_K + 2}')
    srd(p, S_H, sPtr + 6, SZ_ACT, WS_H)
    srd(p, S_O, sPtr + 6, SZ_O, WS_O)
    p.e(f's_mul_i32 s{sOffA}, s{sHead}, 384')
    p.e(f's_add_u32 s{sOffB}, s{sOffA}, {32 * 12288}')
    p.e(f's_mov_b32 s{sInc}, {64 * 12288}')
    p.e(f's_mul_i32 s{sM0}, s{sW}, 3072')
    p.e(f's_mov_b32 s{sWrap}, {-(RING - SLOT)}')
    p.e(f's_mov_b32 s{sStep}, {SLOT}')
    p.e(f's_mov_b32 s{sDcnt}, 0')
    p.e(f's_mov_b32 s{sRcnt}, 0')
    p.e(f's_lshl_b32 s{sT0}, s{sRb}, 4')
    p.e(f's_lshl_b32 s{sT1}, s{sW}, 2')
    p.e(f's_add_u32 s{sT0}, s{sT0}, s{sT1}')
    p.e(f's_mul_i32 s{sH}, s{sT0}, 20480')

    def stage_dma(st):
        p.e(f's_mov_b32 m0, s{sM0}')
        p.e('s_nop 0')
        for pc in range(3):
            p.e(dma(vA, S_A, sOffA, pc, st))
        p.e(f's_add_u32 m0, s{sM0}, 12288')
        p.e(f's_add_u32 s{sOffA}, s{sOffA}, s{sInc}')
        for pc in range(3):
            p.e(dma(vB, S_B, sOffB, pc, st))
        p.e(f's_add_u32 s{sOffB}, s{sOffB}, s{sInc}')
        p.e(m0_advance())

    def hload(ks):
        for qg in range(4):
            p.e(f'buffer_load_dwordx4 {a((ks % 4) * 16 + qg * 4, 4)}, v{vH + qg}, s[{S_H}:{S_H + 3}], s{sH} offen')
        p.e(f's_add_u32 s{sH}, s{sH}, 1024')

    stage_dma(0)
    hload(0)
    hload(1)
    stage_dma(1)
    hload(2)
    stage_dma(2)
    stage_dma(3)
    lane = vLane
    p.e(f'v_and_b32 v{x0}, 15, v{lane}')
    p.e(f'v_lshrrev_b32 v{x1}, 4, v{lane}')
    p.e(f'v_lshrrev_b32 v{x2}, 2, v{x0}')
    p.e(f'v_lshl_add_u32 v{x2}, v{x1}, 3, v{x2}')
    p.e(f'v_mul_u32_u24 v{x2}, 0x180, v{x2}')
    p.e(f'v_and_b32 v{x3}, 3, v{x0}')
    p.e(f'v_and_b32 v{x4}, 8, v{x0}')
    p.e(f'v_lshrrev_b32 v{x4}, 1, v{x4}')
    for par in range(2):
        p.e(f'v_or_b32 v{x5}, {4 * par}, v{x3}')
        p.e(f'v_xor_b32 v{x5}, v{x5}, v{x4}')
        p.e(f'v_lshl_add_u32 v{vR + par}, v{x5}, 4, v{x2}')
    p.e(f'v_mul_u32_u24 v{x2}, 0x180, v{x0}')
    p.e(f'v_add_u32 v{x2}, {(10 % NS) * SLOT}, v{x2}')
    p.e(f'v_lshrrev_b32 v{x3}, 1, v{x0}')
    for par in range(2):
        p.e(f'v_or_b32 v{x5}, {4 * par}, v{x1}')
        p.e(f'v_xor_b32 v{x5}, v{x5}, v{x3}')
        p.e(f'v_lshl_add_u32 v{vKr + par}, v{x5}, 4, v{x2}')
    p.e(f'v_lshrrev_b32 v{x2}, 2, v{x0}')
    p.e(f'v_lshl_add_u32 v{x2}, v{x1}, 2, v{x2}')
    p.e(f'v_mul_u32_u24 v{x2}, 0x180, v{x2}')
    p.e(f'v_add_u32 v{x2}, {(11 % NS) * SLOT}, v{x2}')
    p.e(f'v_bfe_u32 v{x3}, v{x0}, 1, 1')
    p.e(f'v_lshl_add_u32 v{x2}, v{x3}, 4, v{x2}')
    p.e(f'v_and_b32 v{x3}, 1, v{x0}')
    p.e(f'v_lshl_add_u32 v{x2}, v{x3}, 3, v{x2}')
    p.e(f'v_and_b32 v{x3}, 1, v{x1}')
    p.e(f'v_lshlrev_b32 v{x3}, 1, v{x3}')
    p.e(f'v_lshrrev_b32 v{x4}, 3, v{x0}')
    p.e(f'v_or_b32 v{x3}, v{x3}, v{x4}')
    for q in range(4):
        p.e(f'v_xor_b32 v{x5}, {q}, v{x3}')
        p.e(f'v_lshl_add_u32 v{vV + q}, v{x5}, 5, v{x2}')
    for r in range(192):
        p.e(f'v_mov_b32 v{r}, 0')
    for r in range(64, 192):
        p.e(f'v_accvgpr_write_b32 a{r}, 0')
    p.e(wait_site(need=need_stage(0)))
    p.e('s_barrier')
    for n in range(4):
        for u in range(2):
            p.e(w_read(n, u))
    p.e(wait_site(lgkm=True))


def w_read(n, u):
    kk, dt = divmod(n % 48, 12)
    p6, t = dt >> 1, dt & 1
    off = (kk & 1) * 12288 + 1536 * u + 128 * (p6 >> 1) + 8 * t
    buf = aK + (n % 8) * 4 + 2 * u
    return I(f'ds_read_b64_tr_b16 {a(buf, 2)}, v{vR + (p6 & 1)} offset:{off}')


def phase1_body(it, Pn):
    mf = []
    for kk in range(4):
        for dt in range(12):
            n = 12 * kk + dt
            for qg in range(4):
                c = acc(dt, qg)
                mf.append(I(f'v_mfma_f32_16x16x32_bf16 {v(c, 4)}, {a(aK + (n % 8) * 4, 4)}, {a(kk * 16 + qg * 4, 4)}, {v(c, 4)}'))
    seg = Seg(mf)
    N = seg.n
    for n in range(48):
        for u in range(2):
            seg.put(4 * n - LEAD + 2 * u, 'ds', w_read(n, u))
    for n in range(48):
        first_k = (n % 12 == 0)
        seg.put(4 * n - 1, 'pre', wait_site(lgkm=True, vm=first_k))
    for kk in range(4):
        base = 48 * kk
        hb = ((kk + 3) % 4) * 16
        for qg in range(4):
            seg.put(base + 1 + 4 * qg, 'vm', I(f'buffer_load_dwordx4 {a(hb + qg * 4, 4)}, v{vH + qg}, s[{S_H}:{S_H + 3}], s{sH} offen'))
        st = 2 * it + (kk >> 1) + 4
        for pc in range(3):
            if kk & 1:
                seg.put(base + 21 + 8 * pc, 'vm', dma(vB, S_B, sOffB, pc, st))
            else:
                seg.put(base + 21 + 8 * pc, 'vm', dma(vA, S_A, sOffA, pc, st))
    for h in range(2):
        b = 96 * h
        st = 2 * it + h
        seg.put(b + 14, 'pre', f's_mov_b32 m0, s{sM0}')
        seg.put(b + 16, 'pre', f's_add_u32 s{sH}, s{sH}, 1024')
        seg.put(b + 40, 'pre', f's_add_u32 s{sOffA}, s{sOffA}, s{sInc}')
        place_chain(seg, adv_chain(sRcnt, sDelta, -(RING - SLOT), SLOT), b + 42, b + 60)
        seg.put(b + 62, 'pre', f's_add_u32 m0, s{sM0}, 12288')
        seg.put(b + 64, 'pre', f's_add_u32 s{sH}, s{sH}, 1024')
        seg.put(b + 72, 'valu', f'v_add_u32 v{vR}, s{sDelta}, v{vR}')
        seg.put(b + 80, 'valu', f'v_add_u32 v{vR + 1}, s{sDelta}, v{vR + 1}')
        seg.put(b + 76, 'pre', wait_site(need=need_stage(st + 1)))
        seg.put(b + 78, 'pre', 's_barrier')
        seg.put(b + 86, 'pre', f's_add_u32 s{sOffB}, s{sOffB}, s{sInc}')
        ch = m0_advance()
        if h == 0:
            place_chain(seg, ch, b + 88, b + 108)
        else:
            tail = ch
    out = [I(f'{Pn}_p1:')]
    out += seg.emit()
    out += [I(c) for c in tail]
    out.append(I(f's_sub_u32 s{sCnt}, s{sCnt}, 1'))
    out.append(I(f's_cmp_eq_u32 s{sCnt}, 2'))
    out.append(I(f's_cbranch_scc0 {Pn}_p1_nosw'))
    fix = []
    for k in range(4):
        fix.append(I(f's_mov_b32 s{S_A + k}, s{S_K + k}'))
        fix.append(I(f's_mov_b32 s{S_B + k}, s{S_V + k}'))
    fix.append(I(f's_mul_i32 s{sOffA}, s{sHead}, 786432'))
    fix.append(I(f's_add_u32 s{sOffA}, s{sOffA}, {589824 - 2048}'))
    fix.append(I(f's_sub_u32 s{sOffB}, s{sOffA}, 12288'))
    fix.append(I(f's_mov_b32 s{sInc}, 12288'))
    for k in range(3):
        fix.append(I(f'v_mov_b32 v{vA + k}, v{vKs + k}'))
        fix.append(I(f'v_mov_b32 v{vB + k}, v{vVs + k}'))
    if it != 2:
        skip(fix)
    out += fix
    out.append(I(f'{Pn}_p1_nosw:'))
    out.append(I(f's_cmp_lg_u32 s{sCnt}, 0'))
    out.append(I(f's_cbranch_scc1 {Pn}_p1'))
    return out


def k_read(cnt, n):
    t, ks = divmod(n, 6)
    off = 6144 * t + 128 * (ks >> 1)
    return I(f'ds_read_b128 {a(aK + (cnt % 8) * 4, 4)}, v{vR + (ks & 1)} offset:{off}')


def v_read(cnt, dt, u):
    off = 12288 + 6144 * u + 128 * (dt >> 2)
    return I(f'ds_read_b64_tr_b16 {a(aV + (cnt % 8) * 4 + 2 * u, 2)}, v{vV + (dt & 3)} offset:{off}')


def qk_mfmas(par, first_zero=False):
    mf = []
    for n in range(12):
        t, ks = divmod(n, 6)
        for qg in range(4):
            c = '0' if (ks == 0 and first_zero) else (v(vNM + 4 * qg, 4) if ks == 0 else v(Sr(t, qg), 4))
            mf.append(I(f'v_mfma_f32_16x16x32_bf16 {v(Sr(t, qg), 4)}, {a(aK + ((12 * par + n) % 8) * 4, 4)}, {v(Qf(qg, ks), 4)}, {c}'))
    return mf


def pv_mfmas(par):
    mf = []
    for dt in range(12):
        for qg in range(4):
            mf.append(I(f'v_mfma_f32_16x16x32_bf16 {a(Or(dt, qg), 4)}, {a(aV + ((12 * par + dt) % 8) * 4, 4)}, {v(Pr(par, qg), 4)}, {a(Or(dt, qg), 4)}'))
    return mf


def sm_op(kind, t, qg, r, par):
    sr = Sr(t, qg)
    if kind == 'exp':
        return I(f'v_exp_f32 v{sr + r}, v{sr + r}')
    if kind == 'add':
        return I(f'v_add_f32 v{vL + qg}, v{sr + r}, v{vL + qg}')
    return I(f'v_cvt_pk_bf16_f32 v{Pr(par, qg) + 2 * t + r}, v{sr + 2 * r}, v{sr + 2 * r + 1}')


DGAPS = [1, 9, 17, 25, 33, 41]


def att_fixed(seg, par, j, last_k=True):
    G = 11 + j
    npar = 1 - par
    for n in range(4, 12):
        seg.put(4 * n - LEAD, 'ds', k_read(12 * par + n, n))
    if last_k:
        for n in range(4):
            seg.put(96 + 4 * n - LEAD, 'ds', k_read(12 * npar + n, n))
    for dt in range(12):
        for u in range(2):
            seg.put(48 + 4 * dt - LEAD + 2 * u, 'ds', v_read(12 * par + dt, dt, u))
    for n in range(24):
        seg.put(4 * n - 1, 'pre', wait_site(lgkm=True))
    for k, g in enumerate(DGAPS):
        seg.put(g, 'vm', dma(vA, S_A, sOffA, k, G + 4) if k < 3 else dma(vB, S_B, sOffB, k - 3, G + 4))
    seg.put(94, 'pre', f's_mov_b32 m0, s{sM0}')
    g = place_chain(seg, [f's_add_u32 m0, s{sM0}, 12288'], DGAPS[2] + 1, DGAPS[3])
    g = place_chain(seg, [f's_add_u32 s{sOffA}, s{sOffA}, s{sInc}'] + adv_chain(sRcnt, sDelta, -(RING - SLOT), SLOT), 28, 44)
    g = place_chain(seg, [f's_add_u32 s{sOffB}, s{sOffB}, s{sInc}'] + m0_advance(), max(g, DGAPS[5] + 1), 74)
    seg.put(76, 'pre', wait_site(need=need_stage(G + 1)))
    seg.put(78, 'pre', 's_barrier')
    fixed = []
    fixed.append((48, 78, f'v_add_u32 v{vR}, s{sDelta}, v{vR}'))
    fixed.append((48, 78, f'v_add_u32 v{vR + 1}, s{sDelta}, v{vR + 1}'))
    for q in range(4):
        last = 48 + 4 * (8 + q) - LEAD + 2
        fixed.append((last, 95, f'v_add_u32 v{vV + q}, s{sDelta}, v{vV + q}'))
    return fixed


def sm_schedule():
    seg = Seg(qk_mfmas(0) + pv_mfmas(0))
    fixed = att_fixed(seg, 0, 0)
    placed = []
    fixed_at = []
    for lo, hi, txt in fixed:
        g = seg.place(lo, hi, 'valu', I(txt))
        fixed_at.append(g)
    order = [(t, qg) for t in range(2) for qg in range(4)]
    expg = {}
    cur = 0
    for (t, qg) in order:
        ready = 24 * t + 20 + qg + 8
        dead = 96 + 24 * t + qg
        for r in range(4):
            lo = max(ready, cur)
            g = seg.find(lo, dead - 2, 'exp')
            if g is None:
                raise RuntimeError('exp placement failed')
            seg.put(g, 'exp', I('v_exp_f32 v0, v0'))
            expg[(t, qg, r)] = g
            placed.append((g, 'exp', 'exp', t, qg, r))
            cur = g + 1
    items = []
    for (t, qg) in order:
        dead = 96 + 24 * t + qg
        for r in range(4):
            items.append((dead, expg[(t, qg, r)] + 1, 'add', t, qg, r))
        for r in range(2):
            items.append((dead, max(expg[(t, qg, 2 * r)], expg[(t, qg, 2 * r + 1)]) + 1, 'cvt', t, qg, r))
    items.sort(key=lambda x: (x[0], x[1]))
    for dead, lo, kind, t, qg, r in items:
        g = None
        for gg in range(lo, dead):
            gp = seg.gaps[gg % 96]
            if gp.ds is not None and gp.can('valu'):
                g = gg
                break
        if g is None or g > lo + 14:
            g2 = seg.find(lo, dead, 'valu')
            if g2 is not None and (g is None or g2 < g):
                g = g2
        if g is None:
            raise RuntimeError('valu placement failed')
        seg.put(g, 'valu', I('v_add_f32 v0, v0, v0'))
        placed.append((g, 'valu', kind, t, qg, r))
    return placed, fixed_at


SM_PLACED, SM_FIXED = None, None


def att_last(p):
    par = 1
    rest = sorted([x for x in SM_PLACED if x[0] >= 96], key=lambda x: x[0])
    for dt in range(4):
        for u in range(2):
            p.e(v_read(12 * par + dt, dt, u))
    for (g, cls, kind, t, qg, r) in rest:
        p.e(sm_op(kind, t, qg, r, par))
    p.e(wait_site(lgkm=True))
    seg = Seg(pv_mfmas(par))
    for dt in range(4, 12):
        for u in range(2):
            seg.put(4 * dt - LEAD + 2 * u, 'ds', v_read(12 * par + dt, dt, u))
    for n in range(1, 12):
        seg.put(4 * n - 1, 'pre', wait_site(lgkm=True))
    p.e(seg.emit())


def att_step(j):
    global SM_PLACED, SM_FIXED
    if SM_PLACED is None:
        SM_PLACED, SM_FIXED = sm_schedule()
    par = j & 1
    seg = Seg(qk_mfmas(par) + pv_mfmas(par))
    fixed = att_fixed(seg, par, j, last_k=(j != 14))
    todo = [(g, 'valu', I(txt)) for g, (lo, hi, txt) in zip(SM_FIXED, fixed)]
    for (g, cls, kind, t, qg, r) in SM_PLACED:
        if g < 96:
            todo.append((g, cls, sm_op(kind, t, qg, r, 1 - par)))
        else:
            todo.append((g - 96, cls, sm_op(kind, t, qg, r, par)))
    for g, cls, ins in todo:
        seg.put(g, cls, ins)
    return seg


def att_body(it, Pn):
    out = [I(f'{Pn}_att:')]
    out += att_step(2 * it).emit()
    seg = att_step(2 * it + 1)
    out += seg.emit()
    out.append(I(f's_sub_u32 s{sCnt}, s{sCnt}, 1'))
    out.append(I(f's_cmp_lg_u32 s{sCnt}, 0'))
    out.append(I(f's_cbranch_scc1 {Pn}_att'))
    return out


def xlane_reduce(p, reg, tmp, op):
    for sw in ('v_permlane32_swap_b32', 'v_permlane16_swap_b32'):
        p.e(f'v_mov_b32 v{tmp}, v{reg}')
        p.e('s_nop 1')
        p.e(f'{sw} v{tmp}, v{reg}')
        p.e(f'{op} v{reg}, v{tmp}, v{reg}')


def transition(p, Pn):
    global SM_PLACED, SM_FIXED
    if SM_PLACED is None:
        SM_PLACED, SM_FIXED = sm_schedule()
    G = 10
    p.e(wait_site(vm=True))
    p.e('s_nop 7')
    for qg in range(4):
        for ks in range(6):
            d = Qf(qg, ks)
            c0, c1 = acc(2 * ks, qg), acc(2 * ks + 1, qg)
            p.e(f'v_cvt_pk_bf16_f32 v{d}, v{c0}, v{c0 + 1}')
            p.e(f'v_cvt_pk_bf16_f32 v{d + 1}, v{c0 + 2}, v{c0 + 3}')
            p.e(f'v_cvt_pk_bf16_f32 v{d + 2}, v{c1}, v{c1 + 1}')
            p.e(f'v_cvt_pk_bf16_f32 v{d + 3}, v{c1 + 2}, v{c1 + 3}')
    p.e(f'v_mov_b32 v{vR}, v{vKr}')
    p.e(f'v_mov_b32 v{vR + 1}, v{vKr + 1}')
    p.e(wait_site(lgkm=True))
    for n in range(4):
        p.e(k_read(12 + n, n))
    p.e(wait_site(lgkm=True))
    seg = Seg(qk_mfmas(1, first_zero=True))
    for n in range(4, 12):
        seg.put(4 * n - LEAD, 'ds', k_read(12 + n, n))
    for n in range(1, 12):
        seg.put(4 * n - 1, 'pre', wait_site(lgkm=True))
    for k, g in enumerate([1, 5, 9, 13, 17, 21]):
        seg.put(g, 'vm', dma(vA, S_A, sOffA, k, G + 4) if k < 3 else dma(vB, S_B, sOffB, k - 3, G + 4))
    zs = [I(f'v_accvgpr_write_b32 a{r}, 0') for r in range(64)]
    g = 0
    for z in zs:
        g = seg.find(g, 48, 'valu')
        seg.put(g, 'valu', z)
    p.e(f's_mov_b32 m0, s{sM0}')
    seg.put(10, 'pre', f's_add_u32 m0, s{sM0}, 12288')
    g = place_chain(seg, [f's_add_u32 s{sOffA}, s{sOffA}, s{sInc}'] + adv_chain(sRcnt, sDelta, -(RING - SLOT), SLOT), 12, 30)
    g = place_chain(seg, [f's_add_u32 s{sOffB}, s{sOffB}, s{sInc}'] + m0_advance(), max(g, 22), 47)
    p.e(seg.emit())
    p.e(f'v_add_u32 v{vR}, s{sDelta}, v{vR}')
    p.e(f'v_add_u32 v{vR + 1}, s{sDelta}, v{vR + 1}')
    p.e(f's_mov_b32 m0, s{sM0}')
    p.e(wait_site(need=need_stage(G + 1)))
    p.e('s_barrier')
    for n in range(4):
        p.e(k_read(n, n))
    p.e('s_nop 2')
    for qg in range(4):
        s0, s1, m = Sr(0, qg), Sr(1, qg), vT + qg
        p.e(f'v_max3_f32 v{m}, v{s0}, v{s0 + 1}, v{s0 + 2}')
        p.e(f'v_max3_f32 v{m}, v{m}, v{s0 + 3}, v{s1}')
        p.e(f'v_max3_f32 v{m}, v{m}, v{s1 + 1}, v{s1 + 2}')
        p.e(f'v_max_f32 v{m}, v{m}, v{s1 + 3}')
    for qg in range(4):
        xlane_reduce(p, vT + qg, vT + 4, 'v_max_f32')
    p.e(f's_mov_b32 s{sT0}, {float_bits(-DELTA_M):#x}')
    for qg in range(4):
        p.e(f'v_sub_f32 v{vNM + 4 * qg}, s{sT0}, v{vT + qg}')
        for r in range(1, 4):
            p.e(f'v_mov_b32 v{vNM + 4 * qg + r}, v{vNM + 4 * qg}')
        p.e(f'v_mov_b32 v{vL + qg}, 0')
    for t in range(2):
        for qg in range(4):
            for r in range(4):
                p.e(f'v_add_f32 v{Sr(t, qg) + r}, v{vNM + 4 * qg}, v{Sr(t, qg) + r}')
    pre = sorted([x for x in SM_PLACED if x[0] < 96], key=lambda x: (x[0], x[1] != 'exp'))
    exps = [x for x in pre if x[2] == 'exp']
    rest = [x for x in pre if x[2] != 'exp']
    for (g, cls, kind, t, qg, r) in exps:
        p.e(sm_op(kind, t, qg, r, 0))
    p.e('s_nop 0')
    for (g, cls, kind, t, qg, r) in rest:
        p.e(sm_op(kind, t, qg, r, 0))
    p.e(wait_site(lgkm=True))


def float_bits(x):
    import struct
    return struct.unpack('<I', struct.pack('<f', x))[0]


def epilogue(p, Pn):
    p.e('s_nop 7')
    for qg in range(4):
        xlane_reduce(p, vL + qg, vT + 4, 'v_add_f32')
    for qg in range(4):
        p.e(f'v_rcp_f32 v{vL + qg}, v{vL + qg}')
    p.e(f'v_lshlrev_b32 v{vX}, 4, v{vLane}')
    p.e(f's_lshl_b32 s{sT0}, s{sRb}, 4')
    p.e(f's_lshl_b32 s{sT1}, s{sW}, 2')
    p.e(f's_add_u32 s{sT0}, s{sT0}, s{sT1}')
    p.e(f's_mul_i32 s{sT0}, s{sT0}, 192')
    p.e(f's_mul_i32 s{sT1}, s{sHead}, 6')
    p.e(f's_add_u32 s{sT0}, s{sT0}, s{sT1}')
    p.e(f's_lshl_b32 s{sT0}, s{sT0}, 10')
    k = 0
    for qg in range(4):
        for pp in range(6):
            tb = vS + (k % 3) * 12
            k += 1
            for h in range(2):
                for r in range(4):
                    p.e(f'v_accvgpr_read_b32 v{tb + 4 * h + r}, a{Or(2 * pp + h, qg) + r}')
            for r in range(0, 8, 2):
                p.e(f'v_pk_mul_f32 {v(tb + r, 2)}, {v(tb + r, 2)}, {v(vL + (qg & ~1), 2)} op_sel:[0,{qg & 1}] op_sel_hi:[1,{qg & 1}]')
            for r in range(4):
                p.e(f'v_cvt_pk_bf16_f32 v{tb + 8 + r}, v{tb + 2 * r}, v{tb + 2 * r + 1}')
            if pp == 4:
                p.e(f's_add_u32 s{sT0}, s{sT0}, 4096')
            off = (pp % 4) * 1024
            p.e(f'buffer_store_dwordx4 {v(tb + 8, 4)}, v{vX}, s[{S_O}:{S_O + 3}], s{sT0} offen' + (f' offset:{off}' if off else ''))
        p.e(f's_add_u32 s{sT0}, s{sT0}, {192 * 1024 - 4096}')


PROF = False
sSt = 56


def stamp(p, k):
    if PROF:
        p.e(f's_memtime s[{sSt + 2 * k}:{sSt + 2 * k + 1}]')
        p.e('s_waitcnt lgkmcnt(0)')


def prof_begin(p):
    if PROF:
        p.e(f's_memtime s[76:77]')
        p.e(f's_memrealtime s[72:73]')
        p.e('s_waitcnt lgkmcnt(0)')


def prof_out(p, Pn):
    if PROF:
        p.e(f's_memrealtime s[74:75]')
        p.e('s_waitcnt lgkmcnt(0)')
        for k in range(6):
            p.e(f's_sub_u32 s{sSt + 2 * k}, s{sSt + 2 * k}, s76')
            p.e(f'v_mov_b32 v{k}, s{sSt + 2 * k}')
        p.e('v_mov_b32 v6, s72')
        p.e('v_mov_b32 v7, s74')
        srd(p, S_O, sPtr + 6, 0x10000, WS_FLAGS)
        p.e(f's_lshl_b32 s{sT0}, s2, 2')
        p.e(f's_add_u32 s{sT0}, s{sT0}, s{sW}')
        p.e(f's_lshl_b32 s{sT0}, s{sT0}, 5')
        p.e(f'v_mov_b32 v8, s{sT0}')
        p.e(f'v_cmp_eq_u32 vcc, 0, v{vLane}')
        p.e('s_and_saveexec_b64 s[78:79], vcc')
        p.e(f'buffer_store_dwordx4 v[0:3], v8, s[{S_O}:{S_O + 3}], 0 offen')
        p.e(f'buffer_store_dwordx4 v[4:7], v8, s[{S_O}:{S_O + 3}], 0 offen offset:16')
        p.e('s_waitcnt vmcnt(0)')


def gen_c(name='phc_kernel', prof=False):
    global PROF
    PROF = prof
    Pn = name
    p = Prog()
    p.e(kernel_head(name))
    prof_begin(p)
    prologue(p, Pn)
    stamp(p, 0)
    p.e(f's_mov_b32 s{sCnt}, 5')
    p.loop([phase1_body(it, Pn) for it in range(5)])
    stamp(p, 1)
    transition(p, Pn)
    stamp(p, 2)
    p.e(f's_mov_b32 s{sCnt}, 7')
    p.loop([att_body(it, Pn) for it in range(7)])
    p.e(att_step(14).emit())
    att_last(p)
    stamp(p, 3)
    epilogue(p, Pn)
    stamp(p, 4)
    p.e('s_waitcnt vmcnt(0)')
    stamp(p, 5)
    prof_out(p, Pn)
    p.e(f'{Pn}_end:')
    p.e('s_endpgm')
    p.resolve()
    errs = p.verify()
    return p, errs


if __name__ == '__main__':
    p, errs = gen_c()
    for e in errs[:40]:
        print('ERR', e)
    print(len(errs), 'errors;', len(p.static()), 'static instrs;', len(p.trace()), 'dynamic')
    open('c_body.s', 'w').write(p.text())
```

```python
from common import *
from gen_small import fbits, LOG2E

LEAD = 16
aA = 192
aB = 0


def magic(div, limit):
    m = (65536 + div - 1) // div
    assert all((x * m) >> 16 == x // div for x in range(limit)), (div, limit)
    return m


def dma(vreg, srd_, soff, imm, stage):
    o = f' offset:{imm}' if imm else ''
    return I(f'buffer_load_dwordx4 v{vreg}, s[{srd_}:{srd_ + 3}], s{soff} offen{o} lds', tag=('dma', stage))


def need_stage(st):
    return lambda op: op.tag is not None and op.tag[0] == 'dma' and op.tag[1] <= st


def place_chain(seg, chain, lo, hi):
    g = lo
    for c in chain:
        g = seg.find(g, hi, 'pre')
        if g is None:
            raise RuntimeError('no room for salu chain: ' + str(c))
        seg.put(g, 'pre', c)
        g += 1
    return g


def wave_id(p, sW, tmp):
    p.e(f'v_lshrrev_b32 v{tmp}, 6, v0')
    p.e('s_nop 0')
    p.e(f'v_readfirstlane_b32 s{sW}, v{tmp}')


def piece_voff(p, dst, lane, sWaveBase, pc_global_add, gran_per_row, row_pitch, swz, comp, T):
    x0, x1, x2, x3 = T, T + 1, T + 2, T + 3
    if sWaveBase is not None:
        p.e(f'v_add_u32 v{x0}, s{sWaveBase}, v{lane}')
    else:
        p.e(f'v_mov_b32 v{x0}, v{lane}')
    if pc_global_add:
        p.e(f'v_add_u32 v{x0}, {pc_global_add}, v{x0}')
    p.e(f'v_mul_u32_u24 v{x1}, {magic(gran_per_row, 1300)}, v{x0}')
    p.e(f'v_lshrrev_b32 v{x1}, 16, v{x1}')
    p.e(f'v_mul_u32_u24 v{x2}, {gran_per_row}, v{x1}')
    p.e(f'v_sub_u32 v{x2}, v{x0}, v{x2}')
    if swz == 'b2':
        p.e(f'v_lshrrev_b32 v{x3}, 1, v{x1}')
        p.e(f'v_and_b32 v{x3}, 2, v{x3}')
        p.e(f'v_xor_b32 v{x2}, v{x3}, v{x2}')
    p.e(f'v_mul_u32_u24 v{x1}, {row_pitch}, v{x1}')
    p.e(f'v_lshl_add_u32 v{dst}, v{x2}, 4, v{x1}')
    if comp:
        p.e(f'v_subrev_u32 v{dst}, {comp}, v{dst}')


def lane_parts(p, lane, vi, vg):
    p.e(f'v_and_b32 v{vi}, 15, v{lane}')
    p.e(f'v_lshrrev_b32 v{vg}, 4, v{lane}')


def sigma_base(p, dst, vi, vg, rowbytes, T):
    p.e(f'v_lshrrev_b32 v{T}, 2, v{vi}')
    p.e(f'v_lshl_add_u32 v{T}, v{vg}, 2, v{T}')
    p.e(f'v_mul_u32_u24 v{dst}, {rowbytes}, v{T}')
    p.e(f'v_bfe_u32 v{T}, v{vi}, 1, 1')
    p.e(f'v_lshl_add_u32 v{dst}, v{T}, 4, v{dst}')
    p.e(f'v_and_b32 v{T}, 1, v{vi}')
    p.e(f'v_lshl_add_u32 v{dst}, v{T}, 3, v{dst}')


class Ring:
    def __init__(self, slot, ns, sM0, sDcnt, sDelta, sRcnt, sT, sWrap, sStep):
        self.slot, self.ns = slot, ns
        self.sM0, self.sDcnt, self.sDelta, self.sRcnt, self.sT, self.sWrap, self.sStep = sM0, sDcnt, sDelta, sRcnt, sT, sWrap, sStep

    def init(self, p):
        p.e(f's_mov_b32 s{self.sWrap}, {-(self.slot * (self.ns - 1))}')
        p.e(f's_mov_b32 s{self.sStep}, {self.slot}')
        p.e(f's_mov_b32 s{self.sDcnt}, 0')
        p.e(f's_mov_b32 s{self.sRcnt}, 0')

    def adv(self, cnt, out):
        return [f's_add_u32 s{cnt}, s{cnt}, 1',
                f's_cmp_eq_u32 s{cnt}, {self.ns}',
                f's_cselect_b32 s{out}, s{self.sWrap}, s{self.sStep}',
                f's_cselect_b32 s{cnt}, 0, s{cnt}']

    def read_adv(self):
        return self.adv(self.sRcnt, self.sDelta)

    def m0_adv(self):
        return self.adv(self.sDcnt, self.sT) + [f's_add_u32 s{self.sM0}, s{self.sM0}, s{self.sT}']


def gemm_body(it, Pn, cfg):
    nA = cfg['nA']
    G = 4 * nA
    ring = cfg['ring']
    mf = []
    for kk in range(4):
        for an in range(nA):
            n = nA * kk + an
            for qg in range(4):
                c = cfg['acc'](an, qg)
                mf.append(I(f'v_mfma_f32_16x16x32_bf16 {v(c, 4)}, {a(aA + (n % 8) * 4, 4)}, {a(aB + kk * 16 + qg * 4, 4)}, {v(c, 4)}'))
    seg = Seg(mf)
    for n in range(4 * nA):
        for u in range(2):
            seg.put(4 * n - LEAD + 2 * u, 'ds', cfg['a_read'](n, u))
    for n in range(4 * nA):
        seg.put(4 * n - 2, 'pre', wait_site(lgkm=True, vm=(n % nA == 0)))
    vB, sB, S_B = cfg['vB'], cfg['sB'], cfg['S_B']
    for h in range(2):
        b = 2 * G * h
        st = 2 * it + h
        odd = [g for g in range(b + 1, b + 2 * G, 2)]
        used = []
        for kh in range(2):
            kk = 2 * h + kh
            hb = aB + ((kk + 3) % 4) * 16
            for qg in range(4):
                g = b + kh * G + 1 + 2 * qg
                seg.put(g, 'vm', I(f'buffer_load_dwordx4 {a(hb + qg * 4, 4)}, v{vB + qg}, s[{S_B}:{S_B + 3}], s{sB} offen'))
            seg.put(b + kh * G + 8, 'pre', f's_add_u32 s{sB}, s{sB}, 1024')
        target = st + ring.ns - 2
        groups = cfg['dma_groups']
        free = [g for g in odd if seg.can(g, 'vm')]
        npieces = sum(len(x[1]) for x in groups)
        assert len(free) >= npieces, (len(free), npieces)
        lim = [g for g in free if g < b + 2 * G - cfg.get('tail', 10)]
        step = len(lim) / npieces
        k = 0
        prev = b - 1
        for m0i, pieces, post in groups:
            gs = [lim[int((k + j) * step)] for j in range(len(pieces))]
            gm = seg.find(max(prev + 1, gs[0] - 7), gs[0], 'pre')
            assert gm is not None, 'no slot for m0'
            seg.put(gm, 'pre', m0i)
            for (vr, sr, so, imm), g in zip(pieces, gs):
                seg.put(g, 'vm', dma(vr, sr, so, imm, target))
            prev = gs[-1]
            if post:
                prev = place_chain(seg, post, prev + 1, b + 2 * G + 8) - 1
            k += len(pieces)
        first_next = b + 2 * G - LEAD
        chain_end = place_chain(seg, ring.read_adv(), b + 10, first_next - 8)
        seg.put(first_next - 8, "pre", wait_site(need=need_stage(st + 1)))
        seg.put(first_next - 4, 'pre', 's_barrier')
        for reg, lastg, firstg in cfg['addr_adv'](b, G):
            g = None
            for gg in range(max(lastg, chain_end), firstg):
                if seg.gaps[gg % seg.n].ds is not None and seg.can(gg, 'valu'):
                    g = gg
                    break
            assert g is not None
            seg.put(g, 'valu', f'v_add_u32 v{reg}, s{ring.sDelta}, v{reg}')
        if h == 0:
            place_chain(seg, ring.m0_adv(), prev + 1, b + 2 * G + 6)
        else:
            tail = ring.m0_adv()
    out = [I(f'{Pn}_loop:')]
    out += seg.emit()
    out += [I(c) for c in tail]
    sCnt = cfg['sCnt']
    out.append(I(f's_sub_u32 s{sCnt}, s{sCnt}, 1'))
    out.append(I(f's_cmp_lg_u32 s{sCnt}, 0'))
    out.append(I(f's_cbranch_scc1 {Pn}_loop'))
    return out


def gemm_prologue_loads(p, cfg):
    ring = cfg['ring']
    vB, sB, S_B = cfg['vB'], cfg['sB'], cfg['S_B']

    def stage(st):
        for m0i, pieces, post in cfg['dma_groups']:
            p.e(m0i)
            p.e('s_nop 0')
            for (vr, sr, so, imm) in pieces:
                p.e(dma(vr, sr, so, imm, st))
            p.e(post)
        p.e(ring.m0_adv())

    def bload(ks):
        for qg in range(4):
            p.e(f'buffer_load_dwordx4 {a(aB + (ks % 4) * 16 + qg * 4, 4)}, v{vB + qg}, s[{S_B}:{S_B + 3}], s{sB} offen')
        p.e(f's_add_u32 s{sB}, s{sB}, 1024')
    stage(0)
    bload(0)
    bload(1)
    stage(1)
    bload(2)
    for st in range(2, ring.ns - 2):
        stage(st)


def gemm_enter(p, cfg):
    p.e(wait_site(need=need_stage(0)))
    p.e('s_barrier')
    for n in range(4):
        for u in range(2):
            p.e(cfg['a_read'](n, u))
    p.e(wait_site(lgkm=True))


def gen_d(name='phd_kernel'):
    S_W, S_B, S_O = 4, 8, 12
    sOff, sM0, sDcnt, sDelta, sRcnt, sCnt, sB, sSp, sNt, sRb, sW, sT0, sT1, sWrap, sStep = range(28, 43)
    sPtr = 44
    vD, vR, vB, vLane, vX = 192, 198, 204, 217, 218
    SLOT, NS = 20480, 6
    ring = Ring(SLOT, NS, sM0, sDcnt, sDelta, sRcnt, sT0, sWrap, sStep)

    def acc(an, qg):
        return ((qg * 5 + (an >> 1)) * 2 + (an & 1)) * 4

    def a_read(n, u):
        kk, an = divmod(n % 40, 10)
        off = (kk & 1) * 10240 + 5120 * u + 64 * (an >> 1)
        return I(f'ds_read_b64_tr_b16 {a(aA + (n % 8) * 4 + 2 * u, 2)}, v{vR + (an & 1)} offset:{off}')

    def addr_adv(b, G):
        res = []
        for par in range(2):
            last_n = 10 + (8 + par)
            lastg = b + 4 * last_n - LEAD + 2
            firstg = b + 2 * G + 4 * par - LEAD
            res.append((vR + par, lastg, firstg))
        return res
    cfg = dict(nA=10, ring=ring, acc=acc, a_read=a_read, vB=vB, sB=sB, S_B=S_B, addr_adv=addr_adv, sCnt=sCnt, tail=14,
               dma_groups=[(f's_mov_b32 m0, s{sM0}', [(vD + k, S_W, sOff, 1024 * k) for k in range(4)], []),
                           (f's_add_u32 m0, s{sM0}, 4096', [(vD + 4, S_W, sOff, 0)], [f's_add_u32 s{sOff}, s{sOff}, {64 * 1280}'])])
    p = Prog()
    p.e(kernel_head(name))
    p.e('s_cmp_ge_u32 s2, 256')
    p.e(f's_cbranch_scc1 {name}_end')
    p.e(f's_load_dwordx2 s[{sPtr}:{sPtr + 1}], s[0:1], {KA["wo"]}')
    p.e(f's_load_dwordx2 s[{sPtr + 2}:{sPtr + 3}], s[0:1], {KA["ws"]}')
    p.e(f'v_and_b32 v{vLane}, 63, v0')
    wave_id(p, sW, vX)
    p.e(f's_and_b32 s{sSp}, s2, 7')
    p.e(f's_bfe_u32 s{sNt}, s2, 0x20003')
    p.e(f's_lshr_b32 s{sRb}, s2, 5')
    p.e(f's_mul_i32 s{sT0}, s{sW}, 320')
    for pc in range(5):
        piece_voff(p, vD + pc, vLane, sT0, 64 * pc, 20, 1280, 'b2', 1024 * pc if pc < 4 else 0, vX)
    for qg in range(4):
        p.e(f'v_lshlrev_b32 v{vB + qg}, 4, v{vLane}')
        if qg:
            p.e(f'v_add_u32 v{vB + qg}, {qg * 196608}, v{vB + qg}')
    p.e('s_waitcnt lgkmcnt(0)')
    srd(p, S_W, sPtr, SZ_WO)
    srd(p, S_B, sPtr + 2, SZ_O, WS_O)
    srd(p, S_O, sPtr + 2, SZ_ACT * 8, WS_PART)
    ring.init(p)
    p.e(f's_mul_i32 s{sOff}, s{sSp}, {768 * 1280}')
    p.e(f's_mul_i32 s{sT1}, s{sNt}, 320')
    p.e(f's_add_u32 s{sOff}, s{sOff}, s{sT1}')
    p.e(f's_mul_i32 s{sM0}, s{sW}, 5120')
    p.e(f's_lshl_b32 s{sT0}, s{sRb}, 4')
    p.e(f's_lshl_b32 s{sT1}, s{sW}, 2')
    p.e(f's_add_u32 s{sT0}, s{sT0}, s{sT1}')
    p.e(f's_mul_i32 s{sB}, s{sT0}, 192')
    p.e(f's_mul_i32 s{sT1}, s{sSp}, 24')
    p.e(f's_add_u32 s{sB}, s{sB}, s{sT1}')
    p.e(f's_lshl_b32 s{sB}, s{sB}, 10')
    gemm_prologue_loads(p, cfg)
    vi, vg = vX, vX + 1
    lane_parts(p, vLane, vi, vg)
    sigma_base(p, vX + 2, vi, vg, 320, vX + 3)
    p.e(f'v_and_b32 v{vX + 3}, 1, v{vg}')
    for par in range(2):
        p.e(f'v_xor_b32 v{vX + 4}, {par}, v{vX + 3}')
        p.e(f'v_lshl_add_u32 v{vR + par}, v{vX + 4}, 5, v{vX + 2}')
    for r in range(160):
        p.e(f'v_mov_b32 v{r}, 0')
    gemm_enter(p, cfg)
    p.e(f's_mov_b32 s{sCnt}, 6')
    p.loop([gemm_body(it, name, cfg) for it in range(6)])
    p.e(wait_site(vm=True))
    p.e('s_nop 7')
    p.e(f'v_lshlrev_b32 v{vX}, 4, v{vLane}')
    p.e(f's_lshl_b32 s{sT0}, s{sSp}, 7')
    p.e(f's_lshl_b32 s{sT1}, s{sRb}, 4')
    p.e(f's_add_u32 s{sT0}, s{sT0}, s{sT1}')
    p.e(f's_lshl_b32 s{sT1}, s{sW}, 2')
    p.e(f's_add_u32 s{sT0}, s{sT0}, s{sT1}')
    p.e(f's_mul_i32 s{sT0}, s{sT0}, 20')
    p.e(f's_mul_i32 s{sT1}, s{sNt}, 5')
    p.e(f's_add_u32 s{sT0}, s{sT0}, s{sT1}')
    p.e(f's_lshl_b32 s{sT0}, s{sT0}, 10')
    k = 0
    for qg in range(4):
        for pp in range(5):
            c = acc(2 * pp, qg)
            d = 160 + (k % 4) * 4
            k += 1
            for r in range(4):
                p.e(f'v_cvt_pk_bf16_f32 v{d + r}, v{c + 2 * r}, v{c + 2 * r + 1}')
            if pp == 4:
                p.e(f's_add_u32 s{sT0}, s{sT0}, 4096')
            off = (pp % 4) * 1024
            p.e(f'buffer_store_dwordx4 {v(d, 4)}, v{vX}, s[{S_O}:{S_O + 3}], s{sT0} offen' + (f' offset:{off}' if off else ''))
        p.e(f's_add_u32 s{sT0}, s{sT0}, {20 * 1024 - 4096}')
    p.e('s_waitcnt vmcnt(0)')
    p.e(f'{name}_end:')
    p.e('s_endpgm')
    p.resolve()
    return p, p.verify(), SLOT * NS


def gen_f(name='phf_kernel'):
    S_W1, S_W3, S_B, S_O = 4, 8, 12, 16
    sOff, sM0, sDcnt, sDelta, sRcnt, sCnt, sB, sFb, sRb, sW, sT0, sT1, sWrap, sStep, sFi, sRi = range(28, 44)
    sPtr = 44
    vD, vR, vB, vLane, vX = 192, 198, 204, 217, 218
    SLOT, NS = 24576, 6
    ring = Ring(SLOT, NS, sM0, sDcnt, sDelta, sRcnt, sT0, sWrap, sStep)

    def acc(an, qg):
        tt, up = an >> 1, an & 1
        return up * 48 + (tt * 4 + qg) * 4

    def a_read(n, u):
        kk, an = divmod(n % 24, 6)
        tt, up = an >> 1, an & 1
        off = (kk & 1) * 6144 + 3072 * u + 12288 * up
        return I(f'ds_read_b64_tr_b16 {a(aA + (n % 8) * 4 + 2 * u, 2)}, v{vR + tt} offset:{off}')

    def addr_adv(b, G):
        res = []
        for tt in range(3):
            last_n = 6 + 2 * tt + 1
            lastg = b + 4 * last_n - LEAD + 2
            firstg = b + 2 * G + 4 * (2 * tt) - LEAD
            res.append((vR + tt, lastg, firstg))
        return res
    cfg = dict(nA=6, ring=ring, acc=acc, a_read=a_read, vB=vB, sB=sB, S_B=S_B, addr_adv=addr_adv, sCnt=sCnt, tail=6,
               dma_groups=[(f's_mov_b32 m0, s{sM0}', [(vD + k, S_W1, sOff, 1024 * k) for k in range(3)], []),
                           (f's_add_u32 m0, s{sM0}, 12288', [(vD + k, S_W3, sOff, 1024 * k) for k in range(3)],
                            [f's_add_u32 s{sOff}, s{sOff}, {64 * 3072}'])])
    p = Prog()
    p.e(kernel_head(name))
    p.e('s_cmp_ge_u32 s2, 256')
    p.e(f's_cbranch_scc1 {name}_end')
    p.e(f's_load_dwordx2 s[{sPtr}:{sPtr + 1}], s[0:1], {KA["w1"]}')
    p.e(f's_load_dwordx2 s[{sPtr + 2}:{sPtr + 3}], s[0:1], {KA["w3"]}')
    p.e(f's_load_dwordx2 s[{sPtr + 4}:{sPtr + 5}], s[0:1], {KA["ws"]}')
    p.e(f'v_and_b32 v{vLane}, 63, v0')
    wave_id(p, sW, vX)
    p.e(f's_and_b32 s{sT0}, s2, 3')
    p.e(f's_lshl_b32 s{sT0}, s{sT0}, 2')
    p.e(f's_bfe_u32 s{sT1}, s2, 0x20003')
    p.e(f's_add_u32 s{sFb}, s{sT0}, s{sT1}')
    p.e(f's_bfe_u32 s{sT0}, s2, 0x10002')
    p.e(f's_lshl_b32 s{sT0}, s{sT0}, 3')
    p.e(f's_lshr_b32 s{sT1}, s2, 5')
    p.e(f's_add_u32 s{sRb}, s{sT0}, s{sT1}')
    p.e(f's_and_b32 s{sFi}, s{sW}, 1')
    p.e(f's_lshr_b32 s{sRi}, s{sW}, 1')
    p.e(f's_mul_i32 s{sT0}, s{sW}, 192')
    for pc in range(3):
        piece_voff(p, vD + pc, vLane, sT0, 64 * pc, 12, 3072, 'b2', 1024 * pc, vX)
    for qg in range(4):
        p.e(f'v_lshlrev_b32 v{vB + qg}, 4, v{vLane}')
        if qg:
            p.e(f'v_add_u32 v{vB + qg}, {qg * 20480}, v{vB + qg}')
    p.e('s_waitcnt lgkmcnt(0)')
    srd(p, S_W1, sPtr, SZ_W1)
    srd(p, S_W3, sPtr + 2, SZ_W1)
    srd(p, S_B, sPtr + 4, SZ_ACT, WS_H2)
    srd(p, S_O, sPtr + 4, SZ_HH, WS_HH)
    ring.init(p)
    p.e(f's_mul_i32 s{sOff}, s{sFb}, 192')
    p.e(f's_mul_i32 s{sM0}, s{sW}, 3072')
    p.e(f's_lshl_b32 s{sT0}, s{sRb}, 3')
    p.e(f's_lshl_b32 s{sT1}, s{sRi}, 2')
    p.e(f's_add_u32 s{sT0}, s{sT0}, s{sT1}')
    p.e(f's_mul_i32 s{sB}, s{sT0}, 20480')
    gemm_prologue_loads(p, cfg)
    vi, vg = vX, vX + 1
    lane_parts(p, vLane, vi, vg)
    sigma_base(p, vX + 2, vi, vg, 192, vX + 3)
    p.e(f'v_and_b32 v{vX + 3}, 1, v{vg}')
    p.e(f's_mul_i32 s{sT1}, s{sFi}, 3')
    for tt in range(3):
        p.e(f's_add_u32 s{sT0}, s{sT1}, {tt}')
        p.e(f'v_xor_b32 v{vX + 4}, s{sT0}, v{vX + 3}')
        p.e(f'v_lshl_add_u32 v{vR + tt}, v{vX + 4}, 5, v{vX + 2}')
    for r in range(96):
        p.e(f'v_mov_b32 v{r}, 0')
    gemm_enter(p, cfg)
    p.e(f's_mov_b32 s{sCnt}, 5')
    p.loop([gemm_body(it, name, cfg) for it in range(5)])
    p.e(wait_site(vm=True))
    p.e('s_nop 7')
    p.e(f'v_lshlrev_b32 v{vX}, 4, v{vLane}')
    for qg in range(4):
        p.e(f'v_add_u32 v{vB + qg}, {qg * 49152}, v{vX}')
    p.e(f's_lshl_b32 s{sT0}, s{sRb}, 3')
    p.e(f's_lshl_b32 s{sT1}, s{sRi}, 2')
    p.e(f's_add_u32 s{sT0}, s{sT0}, s{sT1}')
    p.e(f's_mul_i32 s{sOff}, s{sT0}, 49152')
    p.e(f's_mov_b32 s{sB}, {fbits(-LOG2E):#x}')
    for tt in range(3):
        p.e(f's_mul_i32 s{sT0}, s{sFb}, 6')
        p.e(f's_mul_i32 s{sT1}, s{sFi}, 3')
        p.e(f's_add_u32 s{sT0}, s{sT0}, s{sT1}')
        p.e(f's_add_u32 s{sT0}, s{sT0}, {tt}')
        p.e(f's_and_b32 s{sT1}, s{sT0}, 1')
        p.e(f's_lshl_b32 s{sT1}, s{sT1}, 3')
        p.e(f's_lshr_b32 s{sT0}, s{sT0}, 1')
        p.e(f's_lshl_b32 s{sT0}, s{sT0}, 10')
        p.e(f's_add_u32 s{sT0}, s{sT0}, s{sT1}')
        p.e(f's_add_u32 s{sDelta}, s{sT0}, s{sOff}')
        for qg in range(4):
            g0, u0 = acc(2 * tt, qg), acc(2 * tt + 1, qg)
            t = 100 + ((tt * 4 + qg) % 4) * 8
            for r in range(4):
                p.e(f'v_mul_f32 v{t + r}, s{sB}, v{g0 + r}')
            for r in range(4):
                p.e(f'v_exp_f32 v{t + r}, v{t + r}')
            for r in range(4):
                p.e(f'v_mul_f32 v{u0 + r}, v{g0 + r}, v{u0 + r}')
            for r in range(4):
                p.e(f'v_add_f32 v{t + r}, 1.0, v{t + r}')
            for r in range(4):
                p.e(f'v_rcp_f32 v{t + r}, v{t + r}')
            p.e('s_nop 0')
            for r in range(4):
                p.e(f'v_mul_f32 v{t + r}, v{t + r}, v{u0 + r}')
            p.e(f'v_cvt_pk_bf16_f32 v{t + 4}, v{t}, v{t + 1}')
            p.e(f'v_cvt_pk_bf16_f32 v{t + 5}, v{t + 2}, v{t + 3}')
            p.e(f'buffer_store_dwordx2 {v(t + 4, 2)}, v{vB + qg}, s[{S_O}:{S_O + 3}], s{sDelta} offen')
    p.e('s_waitcnt vmcnt(0)')
    p.e(f'{name}_end:')
    p.e('s_endpgm')
    p.resolve()
    return p, p.verify(), SLOT * NS


def gen_g(name='phg_kernel'):
    S_W, S_B, S_X, S_M, S_O = 4, 8, 12, 16, 20
    sOff, sM0, sB, sNt, sRb, sW, sT0, sT1 = range(28, 36)
    sPtr = 44
    vD, vR, vB, vLane, vX = 192, 198, 204, 217, 218
    KS, NSL, TB = 12, 7, 5120
    WB = NSL * TB

    def acc(an, qg):
        return (qg * 5 + an) * 4

    def a_read(n, u):
        kk, an = divmod(n, 5)
        off = (kk % NSL) * TB + 2560 * u + 32 * an
        return I(f'ds_read_b64_tr_b16 {a(aA + (n % 8) * 4 + 2 * u, 2)}, v{vR} offset:{off}')

    def stage_dma(kk):
        return [(f's_add_u32 m0, s{sM0}, {(kk % NSL) * TB}', [dma(vD + k, S_W, sOff, 1024 * k, kk) for k in range(4)]),
                (f's_add_u32 m0, s{sM0}, {(kk % NSL) * TB + 4096}', [dma(vD + 4, S_W, sOff, 0, kk)])]

    def bload(kk, qg):
        return I(f'buffer_load_dwordx4 {a(aB + (kk % 4) * 16 + qg * 4, 4)}, v{vB + qg}, s[{S_B}:{S_B + 3}], s{sB} offen')
    p = Prog()
    p.e(kernel_head(name))
    p.e('s_cmp_ge_u32 s2, 256')
    p.e(f's_cbranch_scc1 {name}_end')
    p.e(f's_load_dwordx2 s[{sPtr}:{sPtr + 1}], s[0:1], {KA["w2"]}')
    p.e(f's_load_dwordx2 s[{sPtr + 2}:{sPtr + 3}], s[0:1], {KA["ws"]}')
    p.e(f's_load_dwordx2 s[{sPtr + 4}:{sPtr + 5}], s[0:1], {KA["out"]}')
    p.e(f'v_and_b32 v{vLane}, 63, v0')
    wave_id(p, sW, vX)
    p.e(f's_and_b32 s{sT0}, s2, 1')
    p.e(f's_lshl_b32 s{sT0}, s{sT0}, 2')
    p.e(f's_bfe_u32 s{sT1}, s2, 0x20003')
    p.e(f's_add_u32 s{sNt}, s{sT0}, s{sT1}')
    p.e(f's_bfe_u32 s{sT0}, s2, 0x20001')
    p.e(f's_lshl_b32 s{sT0}, s{sT0}, 3')
    p.e(f's_lshr_b32 s{sT1}, s2, 5')
    p.e(f's_add_u32 s{sRb}, s{sT0}, s{sT1}')
    for pc in range(5):
        piece_voff(p, vD + pc, vLane, None, 64 * pc, 10, 1280, None, 1024 * pc if pc < 4 else 0, vX)
    for qg in range(4):
        p.e(f'v_lshlrev_b32 v{vB + qg}, 4, v{vLane}')
        if qg:
            p.e(f'v_add_u32 v{vB + qg}, {qg * 49152}, v{vB + qg}')
    p.e('s_waitcnt lgkmcnt(0)')
    srd(p, S_W, sPtr, SZ_W1)
    srd(p, S_B, sPtr + 2, SZ_HH, WS_HH)
    srd(p, S_X, sPtr + 2, SZ_ACT, WS_X1)
    srd(p, S_M, sPtr + 2, 15360, WS_MOD)
    srd(p, S_O, sPtr + 4, SZ_X)
    p.e(f's_mul_i32 s{sOff}, s{sW}, {384 * 1280}')
    p.e(f's_mul_i32 s{sT1}, s{sNt}, 160')
    p.e(f's_add_u32 s{sOff}, s{sOff}, s{sT1}')
    p.e(f's_mul_i32 s{sM0}, s{sW}, {WB}')
    p.e(f's_mul_i32 s{sB}, s{sRb}, {4 * 48}')
    p.e(f's_mul_i32 s{sT1}, s{sW}, 12')
    p.e(f's_add_u32 s{sB}, s{sB}, s{sT1}')
    p.e(f's_lshl_b32 s{sB}, s{sB}, 10')

    def pro_stage(kk):
        for m0i, ds in stage_dma(kk):
            p.e(m0i)
            p.e('s_nop 0')
            p.e(ds)
        p.e(f's_add_u32 s{sOff}, s{sOff}, {32 * 1280}')

    def pro_b(kk):
        for qg in range(4):
            p.e(bload(kk, qg))
        p.e(f's_add_u32 s{sB}, s{sB}, 1024')
    pro_stage(0)
    pro_b(0)
    pro_stage(1)
    pro_b(1)
    pro_b(2)
    for kk in range(2, 6):
        pro_stage(kk)
    vi, vg = vX, vX + 1
    lane_parts(p, vLane, vi, vg)
    sigma_base(p, vR, vi, vg, 160, vX + 3)
    p.e(f'v_add_u32 v{vR}, s{sM0}, v{vR}')
    for r in range(80):
        p.e(f'v_mov_b32 v{r}, 0')
    p.e(wait_site(need=need_stage(1)))
    for n in range(4):
        for u in range(2):
            p.e(a_read(n, u))
    p.e(wait_site(lgkm=True))
    mf = []
    for kk in range(KS):
        for an in range(5):
            n = 5 * kk + an
            for qg in range(4):
                c = acc(an, qg)
                mf.append(I(f'v_mfma_f32_16x16x32_bf16 {v(c, 4)}, {a(aA + (n % 8) * 4, 4)}, {a(aB + (kk % 4) * 16 + qg * 4, 4)}, {v(c, 4)}'))
    seg = Seg(mf)
    NT = 5 * KS
    for n in range(4, NT):
        for u in range(2):
            seg.put(4 * n - LEAD + 2 * u, 'ds', a_read(n, u))
    for n in range(1, NT):
        kk = n // 5
        seg.put(4 * n - 2, 'pre', wait_site(lgkm=True, vm=(n % 5 == 0)))
    for kk in range(KS):
        b = 20 * kk
        odd = list(range(b + 1, b + 20, 2))
        if kk + 3 < KS:
            for qg in range(4):
                seg.put(odd.pop(0), 'vm', bload(kk + 3, qg))
            seg.put(b + 8, 'pre', f's_add_u32 s{sB}, s{sB}, 1024')
        if kk + 1 < KS and kk >= 1:
            seg.put(b + 0 if seg.can(b, 'pre') else b + 4, 'pre', wait_site(need=need_stage(kk + 1)))
        if kk + 6 < KS:
            grp = stage_dma(kk + 6)
            g0 = odd[0]
            gm = seg.find(b, g0, 'pre')
            seg.put(gm, 'pre', grp[0][0])
            for d in grp[0][1]:
                last = odd.pop(0)
                seg.put(last, 'vm', d)
            seg.put(last + 1, 'pre', grp[1][0])
            last = odd.pop(0)
            seg.put(last, 'vm', grp[1][1][0])
            gm = seg.find(last + 1, b + 24, 'pre')
            seg.put(gm, 'pre', f's_add_u32 s{sOff}, s{sOff}, {32 * 1280}')
    p.e(seg.emit())
    p.e('s_nop 7')
    p.e('s_waitcnt vmcnt(0) lgkmcnt(0)')
    p.e('s_barrier')
    p.e(f'v_lshlrev_b32 v{vX}, 4, v{vLane}')
    p.e(f's_lshl_b32 s{sT0}, s{sRb}, 2')
    p.e(f's_add_u32 s{sT0}, s{sT0}, s{sW}')
    p.e(f's_mul_i32 s{sB}, s{sT0}, 20480')
    XR, GB = 100, 112
    for an in range(5):
        p.e(f's_mul_i32 s{sT1}, s{sNt}, 5')
        p.e(f's_add_u32 s{sT1}, s{sT1}, {an}')
        p.e(f's_and_b32 s{sOff}, s{sT1}, 1')
        p.e(f's_lshl_b32 s{sOff}, s{sOff}, 3')
        p.e(f's_lshr_b32 s{sT1}, s{sT1}, 1')
        p.e(f's_lshl_b32 s{sT1}, s{sT1}, 10')
        p.e(f's_add_u32 s{sT1}, s{sT1}, s{sOff}')
        p.e(f's_add_u32 s{sT1}, s{sT1}, s{sB}')
        p.e(f'buffer_load_dwordx2 {v(XR + 2 * an, 2)}, v{vX}, s[{S_X}:{S_X + 3}], s{sT1} offen')
    p.e(f'v_lshrrev_b32 v{vX + 1}, 4, v{vLane}')
    p.e(f'v_lshlrev_b32 v{vX + 2}, 4, v{vX + 1}')
    p.e(f's_mul_i32 s{sT1}, s{sNt}, 320')
    p.e(f's_add_u32 s{sT1}, s{sT1}, {5 * 2560}')
    for an in range(5):
        p.e(f'buffer_load_dwordx4 {v(GB + 4 * an, 4)}, v{vX + 2}, s[{S_M}:{S_M + 3}], s{sT1} offen offset:{64 * an}')
    p.e(f's_mul_i32 s{sT0}, s{sW}, 5120')
    p.e(f'v_add_u32 v{vX + 3}, s{sT0}, v{vX}')
    p.e(f'v_add_u32 v{vX + 5}, 40960, v{vX + 3}')
    for qg in range(4):
        for an in range(5):
            p.e(f'ds_write_b128 v{vX + 3 + 2 * (qg >> 1)}, {v(acc(an, qg), 4)} offset:{(qg & 1) * 20480 + an * 1024}')
    p.e('s_waitcnt lgkmcnt(0)')
    p.e('s_barrier')
    p.e(f's_mul_i32 s{sT0}, s{sW}, 20480')
    p.e(f'v_add_u32 v{vX + 3}, s{sT0}, v{vX}')
    for src in range(4):
        for an in range(5):
            p.e(f'ds_read_b128 {v((src * 5 + an) * 4, 4)}, v{vX + 3} offset:{src * 5120 + an * 1024}')
    p.e('s_waitcnt lgkmcnt(0)')
    for an in range(5):
        for r in range(4):
            p.e(f'v_add_f32 v{an * 4 + r}, v{an * 4 + r}, v{20 + an * 4 + r}')
            p.e(f'v_add_f32 v{40 + an * 4 + r}, v{40 + an * 4 + r}, v{60 + an * 4 + r}')
    for an in range(5):
        for r in range(4):
            p.e(f'v_add_f32 v{an * 4 + r}, v{an * 4 + r}, v{40 + an * 4 + r}')
    p.e('s_waitcnt vmcnt(0)')
    p.e(f'v_and_b32 v{vX + 4}, 15, v{vLane}')
    p.e(f's_movk_i32 s{sT0}, 1280')
    p.e(f'v_mul_lo_u32 v{vX + 4}, v{vX + 4}, s{sT0}')
    p.e(f'v_lshl_add_u32 v{vX + 4}, v{vX + 1}, 3, v{vX + 4}')
    p.e(f's_lshl_b32 s{sT0}, s{sRb}, 2')
    p.e(f's_add_u32 s{sT0}, s{sT0}, s{sW}')
    p.e(f's_mul_i32 s{sT0}, s{sT0}, 20480')
    p.e(f's_mul_i32 s{sT1}, s{sNt}, 160')
    p.e(f's_add_u32 s{sT0}, s{sT0}, s{sT1}')
    for an in range(5):
        t = 40 + an * 8
        p.e(f'v_lshlrev_b32 v{t}, 16, v{XR + 2 * an}')
        p.e(f'v_and_b32 v{t + 1}, 0xffff0000, v{XR + 2 * an}')
        p.e(f'v_lshlrev_b32 v{t + 2}, 16, v{XR + 2 * an + 1}')
        p.e(f'v_and_b32 v{t + 3}, 0xffff0000, v{XR + 2 * an + 1}')
        for r in range(4):
            p.e(f'v_fma_f32 v{t + r}, v{an * 4 + r}, v{GB + 4 * an + r}, v{t + r}')
        p.e(f'v_cvt_pk_bf16_f32 v{t + 4}, v{t}, v{t + 1}')
        p.e(f'v_cvt_pk_bf16_f32 v{t + 5}, v{t + 2}, v{t + 3}')
        p.e(f'buffer_store_dwordx2 {v(t + 4, 2)}, v{vX + 4}, s[{S_O}:{S_O + 3}], s{sT0} offen offset:{32 * an}')
    p.e('s_waitcnt vmcnt(0)')
    p.e(f'{name}_end:')
    p.e('s_endpgm')
    p.resolve()
    return p, p.verify(), max(4 * WB, 81920)


if __name__ == '__main__':
    for g in (gen_d, gen_f, gen_g):
        p, errs, lds = g()
        print(g.__name__, len(p.static()), 'static', len(p.trace()), 'dyn', len(errs), 'errors', 'lds', lds)
        for e in errs[:10]:
            print('  ', e)
        open(f'/tmp/{g.__name__}.s', 'w').write(p.text())
```

```python
from common import *
import struct

LOG2E = 1.4426950408889634
CS = (192 ** -0.5) * LOG2E


def fbits(x):
    return struct.unpack('<I', struct.pack('<f', x))[0]


def round_bf16(p, reg, tmp=None):
    p.e(f'v_cvt_pk_bf16_f32 v{reg}, v{reg}, v{reg}')
    p.e(f'v_and_b32 v{reg}, 0xffff0000, v{reg}')


def gen_a(name='pha_kernel', nwg=120):
    p = Prog()
    p.e(kernel_head(name))
    p.e(f's_cmp_ge_u32 s2, {nwg}')
    p.e(f's_cbranch_scc1 {name}_end')
    p.e(f's_load_dwordx2 s[4:5], s[0:1], {KA["c"]}')
    p.e(f's_load_dwordx2 s[6:7], s[0:1], {KA["wmod"]}')
    p.e(f's_load_dwordx2 s[8:9], s[0:1], {KA["ws"]}')
    p.e('v_and_b32 v1, 3, v0')
    p.e('v_lshrrev_b32 v2, 2, v0')
    p.e('s_movk_i32 s10, 7680')
    p.e('v_mul_lo_u32 v3, v2, s10')
    p.e('v_lshl_add_u32 v3, v1, 4, v3')
    p.e('v_lshlrev_b32 v4, 1, v2')
    p.e('s_lshl_b32 s11, s2, 6')
    p.e('s_waitcnt lgkmcnt(0)')
    srd(p, 12, 4, 1280)
    srd(p, 16, 6, SZ_WMOD)
    srd(p, 20, 8, 15360, WS_MOD)
    for m in range(10):
        p.e(f'buffer_load_ushort v{10 + m}, v4, s[12:15], 0 offen offset:{128 * m}')
    for m in range(10):
        p.e(f'buffer_load_dwordx4 {v(24 + 4 * m, 4)}, v3, s[16:19], s11 offen')
        if m < 9:
            p.e(f's_add_u32 s11, s11, {64 * 7680}')
    for r in range(8):
        p.e(f'v_mov_b32 v{64 + r}, 0')
    p.e(f's_mov_b32 s24, {fbits(-LOG2E):#x}')
    p.e('s_waitcnt vmcnt(10)')
    for m in range(10):
        p.e(f'v_lshlrev_b32 v{10 + m}, 16, v{10 + m}')
    for m in range(10):
        p.e(f'v_mul_f32 v{80 + m}, s24, v{10 + m}')
    for m in range(10):
        p.e(f'v_exp_f32 v{80 + m}, v{80 + m}')
    for m in range(10):
        p.e(f'v_add_f32 v{80 + m}, 1.0, v{80 + m}')
    for m in range(10):
        p.e(f'v_rcp_f32 v{80 + m}, v{80 + m}')
    for m in range(10):
        p.e(f'v_mul_f32 v{10 + m}, v{10 + m}, v{80 + m}')
    for m in range(10):
        round_bf16(p, 10 + m)
    for m in range(10):
        p.e(f's_waitcnt vmcnt({9 - m})')
        for d in range(4):
            p.e(f'v_lshlrev_b32 v90, 16, v{24 + 4 * m + d}')
            p.e(f'v_and_b32 v91, 0xffff0000, v{24 + 4 * m + d}')
            p.e(f'v_fmac_f32 v{64 + 2 * d}, v90, v{10 + m}')
            p.e(f'v_fmac_f32 v{64 + 2 * d + 1}, v91, v{10 + m}')
    for sh in (4, 8):
        for r in range(8):
            p.e(f'v_mov_b32 v{72 + r}, v{64 + r}')
        p.e('s_nop 1')
        for r in range(8):
            p.e(f'v_add_f32_dpp v{64 + r}, v{72 + r}, v{64 + r} row_ror:{sh} row_mask:0xf bank_mask:0xf')
    for sw in ('v_permlane16_swap_b32', 'v_permlane32_swap_b32'):
        for r in range(8):
            p.e(f'v_mov_b32 v{72 + r}, v{64 + r}')
        p.e('s_nop 1')
        for r in range(8):
            p.e(f'{sw} v{72 + r}, v{64 + r}')
        for r in range(8):
            p.e(f'v_add_f32 v{64 + r}, v{72 + r}, v{64 + r}')
    p.e('v_lshrrev_b32 v5, 6, v0')
    p.e('v_lshlrev_b32 v5, 7, v5')
    p.e('v_lshl_add_u32 v5, v1, 5, v5')
    p.e('v_and_b32 v6, 63, v0')
    p.e('v_cmp_gt_u32 vcc, 4, v6')
    p.e('s_and_saveexec_b64 s[26:27], vcc')
    p.e('ds_write_b128 v5, v[64:67]')
    p.e('ds_write_b128 v5, v[68:71] offset:16')
    p.e('s_mov_b64 exec, s[26:27]')
    p.e('s_waitcnt lgkmcnt(0)')
    p.e('s_barrier')
    p.e('v_cmp_gt_u32 vcc, 32, v0')
    p.e('s_and_saveexec_b64 s[26:27], vcc')
    p.e(f's_cbranch_execz {name}_end')
    p.e('v_lshlrev_b32 v5, 2, v0')
    for wv in range(4):
        p.e(f'ds_read_b32 v{64 + wv}, v5 offset:{128 * wv}')
    p.e('s_waitcnt lgkmcnt(0)')
    p.e('v_add_f32 v64, v64, v65')
    p.e('v_add_f32 v66, v66, v67')
    p.e('v_add_f32 v64, v64, v66')
    round_bf16(p, 64)
    p.e('s_lshl_b32 s11, s2, 5')
    p.e('s_mul_hi_u32 s25, s11, 0x666667')
    p.e('s_cmp_eq_u32 s25, 1')
    p.e('s_cselect_b32 s28, 1, 0')
    p.e('s_cmp_eq_u32 s25, 4')
    p.e('s_cselect_b32 s28, 1, s28')
    p.e('s_cmp_eq_u32 s28, 1')
    p.e(f's_cbranch_scc0 {name}_st')
    p.e('v_add_f32 v64, 1.0, v64')
    round_bf16(p, 64)
    p.e(f'{name}_st:')
    p.e('s_lshl_b32 s11, s11, 2')
    p.e('buffer_store_dword v64, v5, s[20:23], s11 offen')
    p.e('s_waitcnt vmcnt(0)')
    p.e(f'{name}_end:')
    p.e('s_endpgm')
    p.resolve()
    return p, p.verify()


def row_reduce32(p, reg, tmp):
    for sh in (8, 4, 2, 1):
        p.e(f'v_mov_b32 v{tmp}, v{reg}')
        p.e('s_nop 1')
        p.e(f'v_add_f32_dpp v{reg}, v{tmp}, v{reg} row_ror:{sh} row_mask:0xf bank_mask:0xf')
    p.e(f'v_mov_b32 v{tmp}, v{reg}')
    p.e('s_nop 1')
    p.e(f'v_permlane16_swap_b32 v{tmp}, v{reg}')
    p.e(f'v_add_f32 v{reg}, v{tmp}, v{reg}')


def layernorm20(p, X, T):
    n = 20
    for k in range(4):
        p.e(f'v_add_f32 v{T + k}, v{X + k}, v{X + 4 + k}')
    for b in range(8, n, 4):
        for k in range(4):
            p.e(f'v_add_f32 v{T + k}, v{X + b + k}, v{T + k}')
    p.e(f'v_add_f32 v{T}, v{T}, v{T + 1}')
    p.e(f'v_add_f32 v{T + 2}, v{T + 2}, v{T + 3}')
    p.e(f'v_add_f32 v{T}, v{T}, v{T + 2}')
    row_reduce32(p, T, T + 4)
    p.e(f'v_mul_f32 v{T}, {fbits(-1.0 / 640):#x}, v{T}')
    for k in range(n):
        p.e(f'v_add_f32 v{X + k}, v{T}, v{X + k}')
    for k in range(4):
        p.e(f'v_mul_f32 v{T + k}, v{X + k}, v{X + k}')
    for b in range(4, n, 4):
        for k in range(4):
            p.e(f'v_fmac_f32 v{T + k}, v{X + b + k}, v{X + b + k}')
    p.e(f'v_add_f32 v{T}, v{T}, v{T + 1}')
    p.e(f'v_add_f32 v{T + 2}, v{T + 2}, v{T + 3}')
    p.e(f'v_add_f32 v{T}, v{T}, v{T + 2}')
    row_reduce32(p, T, T + 4)
    p.e(f'v_mov_b32 v{T + 1}, {fbits(1e-5):#x}')
    p.e(f'v_fmac_f32 v{T + 1}, {fbits(1.0 / 640):#x}, v{T}')
    p.e(f'v_rsq_f32 v{T + 1}, v{T + 1}')
    p.e('s_nop 0')
    for k in range(n):
        p.e(f'v_mul_f32 v{X + k}, v{T + 1}, v{X + k}')


def ln_lane_setup(p):
    p.e('v_and_b32 v1, 31, v0')
    p.e('v_lshrrev_b32 v2, 5, v0')
    p.e('s_and_b32 s10, s2, 1')
    p.e('s_lshl_b32 s10, s10, 3')
    p.e('v_add_u32 v2, s10, v2')
    p.e('s_lshr_b32 s10, s2, 1')
    p.e('s_mul_i32 s11, s10, 20480')


def gen_b(name='phb_kernel', nwg=256):
    p = Prog()
    p.e(kernel_head(name))
    p.e(f's_cmp_ge_u32 s2, {nwg}')
    p.e(f's_cbranch_scc1 {name}_end')
    p.e(f's_load_dwordx2 s[4:5], s[0:1], {KA["x"]}')
    p.e(f's_load_dwordx2 s[8:9], s[0:1], {KA["ws"]}')
    ln_lane_setup(p)
    p.e('s_movk_i32 s24, 1280')
    p.e('v_mul_lo_u32 v3, v2, s24')
    p.e('v_lshl_add_u32 v3, v1, 3, v3')
    p.e('v_lshlrev_b32 v4, 4, v1')
    p.e('v_lshrrev_b32 v5, 3, v1')
    p.e('v_lshlrev_b32 v5, 10, v5')
    p.e('v_bfe_u32 v6, v1, 1, 2')
    p.e('v_lshl_add_u32 v6, v6, 4, v2')
    p.e('v_lshl_add_u32 v5, v6, 4, v5')
    p.e('v_and_b32 v6, 1, v1')
    p.e('v_lshl_add_u32 v5, v6, 3, v5')
    p.e('s_waitcnt lgkmcnt(0)')
    srd(p, 12, 4, SZ_X)
    srd(p, 16, 8, 15360, WS_MOD)
    srd(p, 20, 8, SZ_ACT, WS_H)
    XR, A0, B0, X = 16, 32, 56, 80
    for m in range(5):
        p.e(f'buffer_load_dwordx2 {v(XR + 2 * m, 2)}, v3, s[12:15], s11 offen offset:{256 * m}')
    for m in range(5):
        p.e(f'buffer_load_dwordx4 {v(B0 + 4 * m, 4)}, v4, s[16:19], 0 offen offset:{512 * m}')
    p.e('s_movk_i32 s24, 2560')
    for m in range(5):
        p.e(f'buffer_load_dwordx4 {v(A0 + 4 * m, 4)}, v4, s[16:19], s24 offen offset:{512 * m}')
    p.e('s_waitcnt vmcnt(10)')
    for k in range(10):
        p.e(f'v_lshlrev_b32 v{X + 2 * k}, 16, v{XR + k}')
        p.e(f'v_and_b32 v{X + 2 * k + 1}, 0xffff0000, v{XR + k}')
    layernorm20(p, X, 8)
    p.e('s_waitcnt vmcnt(0)')
    p.e(f's_mov_b32 s25, {fbits(CS):#x}')
    for k in range(20):
        p.e(f'v_fma_f32 v{X + k}, v{X + k}, v{A0 + k}, v{B0 + k}')
    for k in range(20):
        p.e(f'v_mul_f32 v{X + k}, s25, v{X + k}')
    for k in range(10):
        p.e(f'v_cvt_pk_bf16_f32 v{XR + k}, v{X + 2 * k}, v{X + 2 * k + 1}')
    for m in range(5):
        p.e(f'buffer_store_dwordx2 {v(XR + 2 * m, 2)}, v5, s[20:23], s11 offen')
        if m < 4:
            p.e('s_add_u32 s11, s11, 4096')
    p.e('s_waitcnt vmcnt(0)')
    p.e(f'{name}_end:')
    p.e('s_endpgm')
    p.resolve()
    return p, p.verify()


def gen_e(name='phe_kernel', nwg=256, nsplit=8):
    p = Prog()
    p.e(kernel_head(name))
    p.e(f's_cmp_ge_u32 s2, {nwg}')
    p.e(f's_cbranch_scc1 {name}_end')
    p.e(f's_load_dwordx2 s[4:5], s[0:1], {KA["x"]}')
    p.e(f's_load_dwordx2 s[8:9], s[0:1], {KA["ws"]}')
    ln_lane_setup(p)
    p.e('v_lshrrev_b32 v5, 3, v1')
    p.e('v_bfe_u32 v6, v1, 1, 2')
    p.e('v_and_b32 v8, 1, v1')
    p.e('v_lshl_add_u32 v7, v6, 4, v2')
    p.e('v_lshlrev_b32 v7, 4, v7')
    p.e('v_lshl_add_u32 v7, v5, 10, v7')
    p.e('v_lshl_add_u32 v7, v8, 3, v7')
    p.e('v_lshlrev_b32 v5, 5, v5')
    p.e('v_lshl_add_u32 v5, v8, 4, v5')
    p.e('v_lshl_add_u32 v5, v6, 2, v5')
    p.e('v_lshlrev_b32 v4, 2, v5')
    p.e('s_movk_i32 s24, 1280')
    p.e('v_mul_lo_u32 v3, v2, s24')
    p.e('v_lshl_add_u32 v3, v5, 1, v3')
    p.e('s_waitcnt lgkmcnt(0)')
    srd(p, 12, 4, SZ_X)
    srd(p, 16, 8, 15360, WS_MOD)
    srd(p, 20, 8, SZ_ACT * nsplit, WS_PART)
    srd(p, 24, 8, SZ_ACT, WS_X1)
    srd(p, 28, 8, SZ_ACT, WS_H2)
    PR = 16
    XR = PR + 10 * nsplit
    GA = XR + 10
    A2 = GA + 20
    SB = A2 + 20
    X = SB + 20
    p.e('s_mov_b32 s32, s11')
    for sp in range(nsplit):
        p.e('s_mov_b32 s33, s32')
        for m in range(5):
            p.e(f'buffer_load_dwordx2 {vv(PR + (sp * 5 + m) * 2, 2)}, v7, s[20:23], s33 offen')
            if m < 4:
                p.e('s_add_u32 s33, s33, 4096')
        p.e(f's_add_u32 s32, s32, {SZ_ACT}')
    for m in range(5):
        p.e(f'buffer_load_dwordx2 {vv(XR + 2 * m, 2)}, v3, s[12:15], s11 offen offset:{256 * m}')

    def modload(dst, seg):
        p.e(f's_movk_i32 s34, {seg * 2560}')
        for m in range(5):
            p.e(f'buffer_load_dwordx4 {vv(dst + 4 * m, 4)}, v4, s[16:19], s34 offen offset:{512 * m}')
    modload(GA, 2)
    modload(A2, 4)
    modload(SB, 3)
    p.e('s_mov_b32 s35, 0x3f80')
    p.e('s_mov_b32 s36, 0x3f800000')
    for k in range(20):
        p.e(f'v_mov_b32 {vv(X + k)}, 0')
    total = 5 * nsplit + 5 + 15
    for sp in range(nsplit):
        p.e(f's_waitcnt vmcnt({total - 5 * (sp + 1)})')
        for k in range(10):
            r = PR + sp * 10 + k
            p.e(f'v_dot2c_f32_bf16 {vv(X + 2 * k)}, s35, {vv(r)}')
            p.e(f'v_dot2c_f32_bf16 {vv(X + 2 * k + 1)}, s36, {vv(r)}')
    p.e('s_waitcnt vmcnt(10)')
    for k in range(10):
        r = XR + k
        lo, hi = X + 2 * k, X + 2 * k + 1
        p.e(f'v_lshlrev_b32 v8, 16, {vv(r)}')
        p.e(f'v_and_b32 v9, 0xffff0000, {vv(r)}')
        p.e(f'v_fma_f32 {vv(lo)}, {vv(lo)}, {vv(GA + 2 * k)}, v8')
        p.e(f'v_fma_f32 {vv(hi)}, {vv(hi)}, {vv(GA + 2 * k + 1)}, v9')
        p.e(f'v_cvt_pk_bf16_f32 {vv(r)}, {vv(lo)}, {vv(hi)}')
        p.e(f'v_lshlrev_b32 {vv(lo)}, 16, {vv(r)}')
        p.e(f'v_and_b32 {vv(hi)}, 0xffff0000, {vv(r)}')
    p.e('s_mov_b32 s33, s11')
    for m in range(5):
        p.e(f'buffer_store_dwordx2 {vv(XR + 2 * m, 2)}, v7, s[24:27], s33 offen')
        if m < 4:
            p.e('s_add_u32 s33, s33, 4096')
    layernorm20(p, X, 8)
    p.e('s_waitcnt vmcnt(5)')
    for k in range(20):
        p.e(f'v_fma_f32 {vv(X + k)}, {vv(X + k)}, {vv(A2 + k)}, {vv(SB + k)}')
    for k in range(10):
        p.e(f'v_cvt_pk_bf16_f32 {vv(PR + k)}, {vv(X + 2 * k)}, {vv(X + 2 * k + 1)}')
    for m in range(5):
        p.e(f'buffer_store_dwordx2 {vv(PR + 2 * m, 2)}, v7, s[28:31], s11 offen')
        if m < 4:
            p.e('s_add_u32 s11, s11, 4096')
    p.e('s_waitcnt vmcnt(0)')
    p.e(f'{name}_end:')
    p.e('s_endpgm')
    p.resolve()
    return p, p.verify()


def vv(r, n=1):
    assert r + n <= 256, 'register above v255'
    return v(r, n)


if __name__ == '__main__':
    for g in (gen_a, gen_b, gen_e):
        p, errs = g()
        print(g.__name__, len(p.static()), 'instrs', len(errs), 'errors')
        for e in errs[:10]:
            print('  ', e)
```

```python
import sys
from common import *
import gen_c, gen_small, gen_gemm

HEADER = open('adaLN_cond__sliding_block_cached__glu_gated_swiglu__prompt.s.ref').read().split('; Override launch')[0]

def assemble(kernels, path):
    out = [HEADER.rstrip()]
    for name, p, grid, block, lds, vg, ac in kernels:
        out.append(f'; @launch kernel={name} grid=({grid},1,1) block=({block},1,1) lds={lds}')
    out.append('.amdgcn_target "amdgcn-amd-amdhsa--gfx950"')
    out.append('.text')
    for name, p, *_ in kernels:
        out.append(p.text())
    out.append('.section .rodata,"a"')
    for name, p, grid, block, lds, vg, ac in kernels:
        out.append(kernel_desc(name, vg, ac))
    open(path, 'w').write('\n'.join(out) + '\n')

def chk(r):
    assert not r[1], r[1][:5]
    return r

def all_kernels(prof=False):
    ks = []
    p, _ = chk(gen_small.gen_a('pha_kernel')); ks.append(('pha_kernel', p, 120, 256, 512, 128, 128))
    p, _ = chk(gen_small.gen_b('phb_kernel')); ks.append(('phb_kernel', p, 256, 256, 0, 128, 128))
    p, _ = chk(gen_c.gen_c('phc_kernel', prof)); ks.append(('phc_kernel', p, 256, 256, gen_c.RING, 512, 256))
    p, _, lds = chk(gen_gemm.gen_d('phd_kernel')); ks.append(('phd_kernel', p, 256, 256, lds, 512, 256))
    p, _ = chk(gen_small.gen_e('phe_kernel')); ks.append(('phe_kernel', p, 256, 256, 0, 256, 256))
    p, _, lds = chk(gen_gemm.gen_f('phf_kernel')); ks.append(('phf_kernel', p, 256, 256, lds, 512, 256))
    p, _, lds = chk(gen_gemm.gen_g('phg_kernel')); ks.append(('phg_kernel', p, 256, 256, lds, 512, 256))
    return ks

if __name__ == '__main__':
    assemble(all_kernels(), 'full.s')
    print('ok')
```

```python
import re

_REG = re.compile(r'^(-|\|)?(abs\()?([vas])(\d+)\)?\|?$')
_RNG = re.compile(r'^([vas])\[(\d+):(\d+)\]$')


def regs_of(tok):
    tok = tok.strip()
    if tok in ('vcc', 'vcc_lo', 'vcc_hi'):
        return [('vcc', 0)]
    if tok == 'exec':
        return [('exec', 0)]
    if tok == 'm0':
        return [('m0', 0)]
    m = _RNG.match(tok.lstrip('-'))
    if m:
        return [(m.group(1), i) for i in range(int(m.group(2)), int(m.group(3)) + 1)]
    m = _REG.match(tok)
    if m:
        return [(m.group(3), int(m.group(4)))]
    return []


def split_ops(rest):
    ops, depth, cur = [], 0, ''
    for ch in rest:
        if ch == '[':
            depth += 1
        elif ch == ']':
            depth -= 1
        if ch == ',' and depth == 0:
            ops.append(cur.strip())
            cur = ''
        else:
            cur += ch
    if cur.strip():
        ops.append(cur.strip())
    mods = ''
    if ops:
        parts = ops[-1].split(None, 1)
        if len(parts) == 2:
            ops[-1], mods = parts
    return ops, mods


TRANS = ('v_exp_f32', 'v_log_f32', 'v_rcp_f32', 'v_rsq_f32', 'v_sqrt_f32', 'v_sin_f32', 'v_cos_f32')
S_NODST = ('s_cmp', 's_waitcnt', 's_barrier', 's_branch', 's_cbranch', 's_nop', 's_sleep', 's_setprio',
           's_endpgm', 's_bitcmp')


class I:
    __slots__ = ('text', 'kind', 'rd', 'wr', 'tag', 'site', 'need', 'mn', 'cval', 'passes', 'srcc')

    def __init__(self, text, tag=None):
        self.text = text
        self.tag = tag
        self.site = None
        self.need = None
        self.cval = None
        self.passes = 0
        self.srcc = []
        t = text.strip()
        self.rd, self.wr = [], []
        if t.endswith(':') or t.startswith('.') or t.startswith(';') or t == '':
            self.kind, self.mn = 'label', ''
            return
        parts = t.split(None, 1)
        mn = parts[0]
        self.mn = mn
        ops, mods = split_ops(parts[1]) if len(parts) > 1 else ([], '')
        R = lambda k: regs_of(ops[k]) if k < len(ops) else []
        allr = lambda k0: [r for k in range(k0, len(ops)) for r in regs_of(ops[k])]
        if mn.startswith('v_mfma'):
            self.kind = 'mfma'
            self.wr = R(0)
            self.rd = R(1) + R(2) + R(3)
            self.srcc = R(3)
            self.passes = 8 if '32x32' in mn else 4
        elif mn.startswith('v_cmp'):
            self.kind = 'valu'
            self.wr = R(0)
            self.rd = allr(1)
        elif mn.startswith('v_permlane') and 'swap' in mn:
            self.kind = 'valu'
            self.wr = R(0) + R(1)
            self.rd = R(0) + R(1)
        elif mn.startswith('v_readfirstlane') or mn.startswith('v_readlane'):
            self.kind = 'valu'
            self.wr = R(0)
            self.rd = allr(1)
        elif mn.startswith('v_cndmask'):
            self.kind = 'valu'
            self.wr = R(0)
            self.rd = allr(1) + ([('vcc', 0)] if len(ops) == 3 else [])
        elif mn.startswith(('v_add_co', 'v_sub_co', 'v_addc_co', 'v_subb_co')):
            self.kind = 'valu'
            self.wr = R(0) + R(1)
            self.rd = allr(2)
        elif mn.startswith('v_'):
            base = mn.replace('_e32', '').replace('_e64', '')
            self.kind = 'trans' if base in TRANS else 'valu'
            self.wr = R(0)
            self.rd = allr(1)
            if mn.startswith(('v_fmac', 'v_mac', 'v_dot2c', 'v_pk_fmac')) or '_dpp' in mn or 'v_writelane' in mn:
                self.rd += R(0)
        elif mn.startswith('ds_read') or mn.startswith('ds_bpermute') or mn.startswith('ds_swizzle'):
            self.kind = 'ds'
            self.wr = R(0)
            self.rd = allr(1)
        elif mn.startswith('ds_write'):
            self.kind = 'ds'
            self.rd = allr(0)
        elif mn.startswith('buffer_load') or mn.startswith('global_load'):
            if re.search(r'\blds\b', mods) or mn.startswith('global_load_lds'):
                self.kind = 'dma'
                self.rd = allr(0) + [('m0', 0)]
            else:
                self.kind = 'vmld'
                self.wr = R(0)
                self.rd = allr(1)
        elif mn.startswith('buffer_store') or mn.startswith('global_store'):
            self.kind = 'vmst'
            self.rd = allr(0)
        elif mn.startswith('buffer_atomic') or mn.startswith('global_atomic'):
            self.kind = 'vmst'
            self.rd = allr(0)
            if 'sc0' in mods:
                self.kind = 'vmld'
                self.wr = R(0)
        elif mn.startswith('buffer_wbl2') or mn.startswith('buffer_inv'):
            self.kind = 'vmst'
        elif mn.startswith('s_load') or mn.startswith('s_memtime') or mn.startswith('s_memrealtime'):
            self.kind = 'smem'
            self.wr = R(0)
            self.rd = allr(1)
        elif mn == 's_waitcnt':
            self.kind = 'wait'
        elif mn == 's_barrier':
            self.kind = 'barrier'
        elif mn == 's_nop':
            self.kind = 'nop'
            self.cval = int(ops[0])
        elif mn.startswith('s_branch') or mn.startswith('s_cbranch') or mn == 's_endpgm':
            self.kind = 'branch'
            if 'vcc' in mn:
                self.rd = [('vcc', 0)]
            if 'scc' in mn:
                self.rd = [('scc', 0)]
            if 'exec' in mn:
                self.rd = [('exec', 0)]
        elif mn.startswith('s_'):
            self.kind = 'salu'
            if mn.startswith(S_NODST):
                self.rd = allr(0)
                if mn.startswith(('s_cmp', 's_bitcmp')):
                    self.wr = [('scc', 0)]
            else:
                self.wr = R(0)
                self.rd = allr(1)
                if mn.startswith(('s_add', 's_sub', 's_lshl', 's_lshr', 's_and', 's_or', 's_xor', 's_min', 's_max',
                                  's_ashr', 's_bfe', 's_not', 's_andn2')):
                    self.wr = self.wr + [('scc', 0)]
                if mn.startswith(('s_addc', 's_subb', 's_cselect', 's_cmov')):
                    self.rd = self.rd + [('scc', 0)]
                if 'saveexec' in mn:
                    self.wr = self.wr + [('exec', 0)]
                    self.rd = self.rd + [('exec', 0)]
                if mn.startswith(('s_addk', 's_mulk')):
                    self.rd = self.rd + R(0)
        else:
            raise ValueError('cannot parse: ' + text)

    def __repr__(self):
        return self.text


def wait_site(vm=False, lgkm=False, need=None):
    i = I('s_waitcnt SITE_PLACEHOLDER')
    i.kind = 'site'
    i.site = {'vm': vm or need is not None, 'lgkm': lgkm}
    i.need = need
    return i


class Prog:
    def __init__(self):
        self.items = []

    def e(self, x, tag=None):
        if isinstance(x, str):
            for ln in x.split('\n'):
                if ln.strip():
                    self.items.append(I(ln.strip(), tag))
        elif isinstance(x, I):
            self.items.append(x)
        else:
            for y in x:
                self.e(y, tag)
        return self

    def loop(self, bodies):
        t0 = [i.text for i in bodies[0]]
        for k, b in enumerate(bodies[1:], 1):
            tk = [i.text for i in b]
            if tk != t0:
                for a, c in zip(t0, tk):
                    if a != c:
                        raise ValueError(f'loop body {k} differs: {a!r} vs {c!r}')
                raise ValueError(f'loop body {k} differs in length {len(t0)} vs {len(tk)}')
        self.items.append(('loop', bodies))

    def trace(self):
        out = []
        sid = 0
        for it in self.items:
            if isinstance(it, I):
                out.append((sid, it))
                sid += 1
            else:
                bodies = it[1]
                for b in bodies:
                    for k, x in enumerate(b):
                        out.append((sid + k, x))
                sid += len(bodies[0])
        return out

    def static(self):
        out = []
        for it in self.items:
            if isinstance(it, I):
                out.append(it)
            else:
                out.extend(it[1][0])
        return out

    def resolve(self, verbose=False):
        tr = self.trace()
        n = len(tr)
        VM = ('vmld', 'vmst', 'dma')
        res = {}
        for counter in ('vm', 'lgkm'):
            q = []
            need_static = {}
            for rounds in range(3):
                q = []
                new_need = {}
                for pos in range(n):
                    sid, ins = tr[pos]
                    if ins.kind == 'site' and ins.site[counter]:
                        regs = set()
                        p2 = pos + 1
                        while p2 < n:
                            j = tr[p2][1]
                            if j.kind == 'site' and j.site[counter]:
                                break
                            if j.kind == 'wait' and self._fixed_wait(j, counter) == 0:
                                break
                            regs.update(j.rd)
                            regs.update(j.wr)
                            p2 += 1
                        N = None
                        for k in range(len(q) - 1, -1, -1):
                            op = q[k]
                            hit = bool(regs.intersection(op.wr))
                            if counter == 'vm' and ins.need is not None and ins.need(op):
                                hit = True
                            if hit:
                                N = len(q) - 1 - k
                                break
                        if N is not None:
                            new_need[sid] = min(new_need.get(sid, 1 << 30), N)
                        use = need_static.get(sid, N) if rounds else N
                        if use is not None:
                            while len(q) > use:
                                q.pop(0)
                    elif ins.kind == 'wait':
                        f = self._fixed_wait(ins, counter)
                        if f is not None:
                            while len(q) > f:
                                q.pop(0)
                    elif counter == 'vm' and ins.kind in VM:
                        q.append(ins)
                    elif counter == 'lgkm' and ins.kind in ('ds', 'smem'):
                        q.append(ins)
                if new_need == need_static:
                    break
                for s, v in new_need.items():
                    need_static[s] = min(need_static.get(s, 1 << 30), v) if rounds else v
            for s, v in need_static.items():
                res.setdefault(s, {})[counter] = v
        self.site_res = res
        for sid, ins in self.trace():
            if ins.kind == 'site':
                r = res.get(sid, {})
                parts = []
                if 'vm' in r:
                    parts.append(f'vmcnt({min(r["vm"], 63)})')
                if 'lgkm' in r:
                    parts.append(f'lgkmcnt({min(r["lgkm"], 15)})')
                ins.text = ('s_waitcnt ' + ' '.join(parts)) if parts else ''
        return res

    @staticmethod
    def _fixed_wait(ins, counter):
        m = re.search(r'vmcnt\((\d+)\)' if counter == 'vm' else r'lgkmcnt\((\d+)\)', ins.text)
        return int(m.group(1)) if m else None

    def verify(self):
        tr = [(s, i) for s, i in self.trace()]
        errs = []
        qv, ql = [], []
        st = 0
        lastw = {}
        lastc = {}
        laststore = {}
        for pos, (sid, ins) in enumerate(tr):
            k = ins.kind
            if k == 'label':
                continue
            if k == 'site' or k == 'wait':
                if ins.text == '':
                    continue
                f = self._fixed_wait(ins, 'vm')
                if f is not None:
                    while len(qv) > f:
                        qv.pop(0)
                f = self._fixed_wait(ins, 'lgkm')
                if f is not None:
                    while len(ql) > f:
                        ql.pop(0)
                st += 1
                continue
            if ('scc', 0) in ins.rd:
                w = lastw.get(('scc', 0))
                wm = w[1].mn if w else ''
                ok = wm.startswith(('s_cmp', 's_bitcmp')) if not ins.mn.startswith(('s_addc', 's_subb')) else wm.startswith(('s_add_u32', 's_sub_u32', 's_addc'))
                if not ok:
                    errs.append(f'[{pos}] SCC of {ins.text} comes from {w[1].text if w else None}')
            touched = set(ins.rd) | set(ins.wr)
            for q, nm in ((qv, 'vm'), (ql, 'lgkm')):
                for op in q:
                    if touched.intersection(op.wr):
                        errs.append(f'[{pos}] {ins.text}  touches pending {nm} result of  {op.text}')
            if len(qv) > 63 + 1 and k in ('vmld', 'vmst', 'dma'):
                pass
            def dist(s0):
                return st - s0 - 1
            isvalu = k in ('valu', 'trans')
            for r in ins.rd:
                if r in lastw:
                    s0, p = lastw[r]
                    d = dist(s0)
                    req = 0
                    if p.kind == 'mfma':
                        if k == 'mfma':
                            if r in ins.srcc and set(ins.srcc) == set(p.wr) and r not in [x for x in ins.rd if x not in ins.srcc]:
                                req = 0
                            elif r in ins.srcc:
                                req = {4: 6, 8: 10}[p.passes]
                            else:
                                req = {4: 8, 8: 12}[p.passes]
                        elif isvalu or k in ('ds', 'vmst', 'vmld', 'dma'):
                            req = {4: 8, 8: 12}[p.passes]
                    elif p.kind in ('valu', 'trans'):
                        if k == 'mfma' and r[0] in 'va':
                            req = 2
                        elif 'permlane' in ins.mn and r[0] == 'v':
                            req = 2
                        elif ('readfirstlane' in ins.mn or 'readlane' in ins.mn) and r[0] == 'v':
                            req = 1
                        elif '_dpp' in ins.mn and r[0] == 'v':
                            req = 2
                        elif p.kind == 'trans' and k == 'valu' and r[0] == 'v':
                            req = 1
                        elif r[0] in ('s', 'vcc') and isvalu:
                            req = 2
                        elif r[0] == 's' and k in ('vmld', 'vmst', 'dma'):
                            req = 5
                        elif r[0] in ('s',) and k in ('salu', 'branch'):
                            req = 1
                    elif p.kind == 'salu' and r[0] == 'm0' and k == 'dma':
                        req = 1
                    if d < req:
                        errs.append(f'[{pos}] hazard RAW {r}: {p.text}  ->  {ins.text}  dist {d} < {req}')
            for r in ins.wr:
                if r in lastw:
                    s0, p = lastw[r]
                    if p.kind == 'mfma' and (isvalu or k in ('ds', 'vmld')):
                        req = {4: 8, 8: 12}[p.passes]
                        if dist(s0) < req:
                            errs.append(f'[{pos}] hazard WAW {r}: {p.text}  ->  {ins.text}  dist {dist(s0)} < {req}')
                if isvalu and r in lastc:
                    s0, p = lastc[r]
                    req = {4: 3, 8: 7}[p.passes]
                    if dist(s0) < req:
                        errs.append(f'[{pos}] hazard WAR srcC {r}: {p.text}  ->  {ins.text}')
                if isvalu and r in laststore and dist(laststore[r]) < 2:
                    errs.append(f'[{pos}] hazard store-data WAR {r}: {ins.text}')
            for r in ins.wr:
                lastw[r] = (st, ins)
            if k == 'mfma':
                for r in ins.srcc:
                    lastc[r] = (st, ins)
            if k == 'vmst' and ('x4' in ins.mn or 'x3' in ins.mn):
                for r in ins.rd:
                    if r[0] in 'va':
                        laststore[r] = st
            if k in ('vmld', 'vmst', 'dma'):
                qv.append(ins)
            if k in ('ds', 'smem'):
                ql.append(ins)
            st += (ins.cval + 1) if k == 'nop' else 1
        return errs

    def text(self):
        out = []
        for i in self.static():
            if i.text == '':
                continue
            if i.kind == 'label':
                out.append(i.text)
            else:
                out.append('  ' + i.text)
        return '\n'.join(out)


class Gap:
    __slots__ = ('pre', 'ds', 'valu', 'exp', 'vm')

    def __init__(self):
        self.pre, self.ds, self.valu, self.exp, self.vm = [], None, [], None, None

    def can(self, cls):
        if cls == 'pre':
            if self.vm is not None:
                return False
            light = self.ds is None and self.exp is None and len(self.valu) <= 1
            return len(self.pre) < (2 if light else 1)
        if self.vm is not None:
            return False
        heavy_pre = len(self.pre) >= 2
        if cls == 'vm':
            return not self.pre and self.ds is None and self.exp is None and not self.valu
        if cls == 'ds':
            return self.ds is None and self.exp is None and len(self.valu) <= 1 and not heavy_pre
        if cls == 'exp':
            return self.ds is None and self.exp is None and not self.valu and not heavy_pre
        if cls == 'valu':
            if self.exp is not None:
                return False
            if self.ds is not None:
                return len(self.valu) < 1
            return len(self.valu) < (1 if heavy_pre else 2)
        raise ValueError(cls)

    def put(self, cls, ins):
        assert self.can(cls), (cls, ins.text, self.dump())
        if cls == 'pre':
            self.pre.append(ins)
        elif cls == 'vm':
            self.vm = ins
        elif cls == 'ds':
            self.ds = ins
        elif cls == 'exp':
            self.exp = ins
        else:
            self.valu.append(ins)

    def dump(self):
        return [x.text for x in self.items()]

    def items(self):
        out = list(self.pre)
        if self.ds is not None:
            out.append(self.ds)
        if self.vm is not None:
            out.append(self.vm)
        if self.exp is not None:
            out.append(self.exp)
        out.extend(self.valu)
        return out


class Seg:
    def __init__(self, mfmas):
        self.mf = mfmas
        self.n = len(mfmas)
        self.gaps = [Gap() for _ in range(self.n)]

    def put(self, g, cls, ins):
        if isinstance(ins, str):
            ins = I(ins)
        self.gaps[g % self.n].put(cls, ins)
        return ins

    def can(self, g, cls):
        return self.gaps[g % self.n].can(cls)

    def find(self, lo, hi, cls, step=1):
        for g in range(lo, hi, step):
            if self.can(g, cls):
                return g
        return None

    def place(self, lo, hi, cls, ins):
        g = self.find(lo, hi, cls)
        if g is None:
            raise RuntimeError(f'no gap for {ins} cls {cls} in [{lo},{hi})')
        self.put(g, cls, ins)
        return g

    def emit(self, skip_mfma=None):
        out = []
        for i in range(self.n):
            if self.mf[i] is not None and not (skip_mfma and skip_mfma(i)):
                out.append(self.mf[i])
            out.extend(self.gaps[i].items())
        return out


class ScalarQueue:
    def __init__(self, seg):
        self.seg = seg
        self.items = []

    def add(self, lo, hi, instrs):
        self.items.append((lo, hi, list(instrs)))

    def place(self):
        cur = -10 ** 9
        for lo, hi, instrs in sorted(self.items, key=lambda x: (x[0], x[1])):
            g = max(cur, lo)
            for c in instrs:
                g = self.seg.find(g, hi, 'pre')
                if g is None:
                    raise RuntimeError(f'no scalar slot for {c} in [{lo},{hi})')
                self.seg.put(g, 'pre', c)
                cur = g
            self.last = cur
        return cur
```

```python
from asmlib import I, Prog, Seg, wait_site, ScalarQueue

KA = dict(x=0, k=8, v=16, wq=24, wo=32, bx=40, w1=48, w3=56, w2=64, c=72, wmod=80, out=88, dbg=96, ws=104)

WS_MOD = 0x0
WS_H = 0x10000
WS_O = 0x300000
WS_PART = 0x1B00000
WS_X1 = 0x2F00000
WS_H2 = 0x3200000
WS_HH = 0x3500000
WS_FLAGS = 0x3C00000
WS_WF = 0x4000000
WS_WG = 0x4400000
SZ_WF = 16 * 20 * 12 * 1024
SZ_WG = 8 * 48 * 5 * 1024
SZ_ACT = 128 * 20 * 1024
SZ_O = 128 * 192 * 1024
SZ_HH = 128 * 48 * 1024

SZ_X = 2048 * 640 * 2
SZ_KV = 32 * 2048 * 192 * 2
SZ_WQ = 640 * 6144 * 2
SZ_WO = SZ_WQ
SZ_W1 = 640 * 1536 * 2
SZ_WMOD = 640 * 3840 * 2


def v(a, n=1):
    return f'v{a}' if n == 1 else f'v[{a}:{a + n - 1}]'


def a(x, n=1):
    return f'a{x}' if n == 1 else f'a[{x}:{x + n - 1}]'


def s(x, n=1):
    return f's{x}' if n == 1 else f's[{x}:{x + n - 1}]'


def srd(p, d, base, size, off=0):
    if off:
        p.e(f's_add_u32 s{d}, s{base}, {off}')
        p.e(f's_addc_u32 s{d + 1}, s{base + 1}, 0')
    else:
        p.e(f's_mov_b32 s{d}, s{base}')
        p.e(f's_mov_b32 s{d + 1}, s{base + 1}')
    p.e(f's_mov_b32 s{d + 2}, {size}')
    p.e(f's_mov_b32 s{d + 3}, 0x20000')


def kernel_head(name):
    return f'''.globl {name}
.p2align 8
.type {name},@function
{name}:'''


def kernel_desc(name, vgpr=512, accum=256, sgpr=102):
    return f'''.p2align 6
.amdhsa_kernel {name}
  .amdhsa_next_free_vgpr {vgpr}
  .amdhsa_next_free_sgpr {sgpr}
  .amdhsa_accum_offset {accum}
  .amdhsa_group_segment_fixed_size 0
  .amdhsa_kernarg_size 112
  .amdhsa_user_sgpr_count 2
  .amdhsa_user_sgpr_kernarg_segment_ptr 1
  .amdhsa_system_sgpr_workgroup_id_x 1
.end_amdhsa_kernel'''


def skip(ins_list):
    for i in ins_list:
        i.kind = 'label'
        i.rd, i.wr = [], []
    return ins_list


sW = 82
vLANE = 255
PTR = dict(wq=44, k=46, v=48, ws=50, x=52, wo=54, w1=56, w3=58, w2=60, out=62)
SC = {'v': ' sc1'}
RING_BYTES = 147456
LDS_PF = RING_BYTES
LDS_LN = RING_BYTES + 4096
LDS_TOTAL = LDS_LN + 512
FL_B, FL_C, FL_D, FL_E, FL_F, FL_N = 0, 8, 16, 24, 40, 56
sSy0, sSy1 = 83, 3
vSy0, vSy1 = 253, 254
POLL_LIMIT = 400000


OPT = dict(o_local=False, quiet=True, o_plain_ld=False)


def sc():
    return SC['v']


def sc_o_load():
    return '' if OPT['o_plain_ld'] else SC['v']


def sc_o_store():
    return '' if OPT['o_local'] else SC['v']


def load_ptrs(p, names):
    for n in names:
        p.e(f's_load_dwordx2 s[{PTR[n]}:{PTR[n] + 1}], s[0:1], {KA[n]}')


def lane_wave(p):
    p.e(f'v_and_b32 v{vLANE}, 63, v0')
    p.e(f'v_lshrrev_b32 v{vSy0}, 6, v0')
    p.e('s_nop 0')
    p.e(f'v_readfirstlane_b32 s{sW}, v{vSy0}')


def is_store(op):
    return op.kind == 'vmst'


MK = {}


def mk(p, name):
    if name in MK:
        rt_mark(p, MK[name])


def signal(p, Pn, emit_off, tag=''):
    mk(p, tag + '_pre')
    p.e(wait_site(need=is_store))
    mk(p, tag + '_drained')
    p.e('s_barrier')
    mk(p, tag + '_bar')
    blk = Prog()
    blk.e(f's_cmp_eq_u32 s{sW}, 0')
    blk.e(f's_cbranch_scc0 {Pn}_nosig')
    emit_off(blk)
    blk.e(f's_add_u32 s{sSy0}, s{sSy0}, {WS_FLAGS}')
    blk.e(f'v_mov_b32 v{vSy0}, s{sSy0}')
    blk.e(f'v_mov_b32 v{vSy1}, 1')
    blk.e('s_mov_b64 exec, 1')
    blk.e(f'global_store_dword v{vSy0}, v{vSy1}, s[{PTR["ws"]}:{PTR["ws"] + 1}] sc1')
    blk.e('s_mov_b64 exec, -1')
    blk.e(f'{Pn}_nosig:')
    p.e(skip(blk.items))


def await_flags(p, Pn, emit_off, nwords, issue=None):
    if issue is not None:
        p.e(f's_cmp_eq_u32 s{sW}, 0')
        p.e(f's_cbranch_scc1 {Pn}_w0a')
        issue(p)
        p.e(f'{Pn}_w0a:')
    blk = Prog()
    blk.e(f's_cmp_eq_u32 s{sW}, 0')
    blk.e(f's_cbranch_scc0 {Pn}_nopoll')
    emit_off(blk)
    blk.e(f's_add_u32 s{sSy0}, s{sSy0}, {WS_FLAGS}')
    blk.e(f'v_lshlrev_b32 v{vSy0}, 2, v{vLANE}')
    blk.e(f'v_add_u32 v{vSy0}, s{sSy0}, v{vSy0}')
    blk.e(f's_mov_b32 exec_lo, {(1 << nwords) - 1:#x}')
    blk.e('s_mov_b32 exec_hi, 0')
    blk.e(f's_mov_b32 s{sSy1}, {POLL_LIMIT}')
    blk.e(f'{Pn}_poll:')
    blk.e(f'global_load_dword v{vSy1}, v{vSy0}, s[{PTR["ws"]}:{PTR["ws"] + 1}] sc1')
    blk.e('s_waitcnt vmcnt(0)')
    blk.e(f'v_cmp_ne_u32 vcc, 1, v{vSy1}')
    blk.e('s_nop 1')
    blk.e('s_cmp_eq_u64 vcc, 0')
    blk.e(f's_cbranch_scc1 {Pn}_ready')
    blk.e('s_sleep 1')
    blk.e(f's_sub_u32 s{sSy1}, s{sSy1}, 1')
    blk.e(f's_cmp_lg_u32 s{sSy1}, 0')
    blk.e(f's_cbranch_scc1 {Pn}_poll')
    blk.e('s_endpgm')
    blk.e(f'{Pn}_ready:')
    blk.e('s_mov_b64 exec, -1')
    blk.e(f'{Pn}_nopoll:')
    p.e(skip(blk.items))
    p.e('s_barrier')
    if issue is not None:
        blk = Prog()
        blk.e(f's_cmp_eq_u32 s{sW}, 0')
        blk.e(f's_cbranch_scc0 {Pn}_w0b')
        issue(blk)
        blk.e(f'{Pn}_w0b:')
        p.e(skip(blk.items))


class Feed:
    def __init__(self, units=()):
        self.units = list(units)

    def emit(self, p, n=1):
        for _ in range(n):
            if self.units:
                p.e(self.units.pop(0))

    def flush(self, p):
        self.emit(p, len(self.units))


sE0, sE1 = 94, 95


def zero_v(p, lo, hi):
    for r in range(lo, hi, 2):
        p.e(f'v_mov_b64 v[{r}:{r + 1}], 0')


RT = {'on': False}
WS_RT = WS_FLAGS + 0x40000
NMARK = 14
sMK = 64


def rt_begin(p):
    if RT['on']:
        p.e('s_memrealtime s[96:97]')
        p.e('s_waitcnt lgkmcnt(0)')
        p.e('s_mov_b32 s80, 0')
        for k in range(NMARK):
            p.e(f's_mov_b32 s{sMK + k}, s96')


def rt_mark(p, k):
    if RT['on']:
        p.e('s_memrealtime s[78:79]')
        p.e('s_waitcnt lgkmcnt(0)')
        p.e(f's_mov_b32 s{sMK + k}, s78')


def rt_end(p, kidx, sfx=''):
    if RT['on']:
        rt_mark(p, NMARK - 1)
        p.e(f's_cmp_lg_u32 s{sW}, 0')
        p.e(f's_cbranch_scc1 rt_skip_{kidx}{sfx}')
        p.e('s_memrealtime s[98:99]')
        p.e(f's_load_dwordx2 s[94:95], s[0:1], {KA["ws"]}')
        p.e('s_waitcnt lgkmcnt(0)')
        srd(p, 88, 94, 0x40000, WS_RT)
        p.e('s_mov_b64 exec, 1')
        p.e('v_mov_b32 v0, s96')
        p.e('v_mov_b32 v1, s98')
        for k in range(NMARK):
            p.e(f's_sub_u32 s93, s{sMK + k}, s80')
            p.e(f'v_mov_b32 v{2 + k}, s93')
        p.e('s_lshl_b32 s93, s2, 6')
        p.e(f's_add_u32 s93, s93, {kidx * 16384}')
        p.e('v_mov_b32 v16, s93')
        for k in range(4):
            p.e(f'buffer_store_dwordx4 v[{4 * k}:{4 * k + 3}], v16, s[88:91], 0 offen offset:{16 * k}')
        p.e('s_waitcnt vmcnt(0)')
        p.e(f'rt_skip_{kidx}{sfx}:')


def read_stamps(hx, np, ws, kidx, n):
    return hx.download(ws, np.uint32, 16 * 256, WS_RT + kidx * 16384).reshape(256, 16)[:n].astype(np.int64)
```

```python
from common import *

SLOT = 24576
NS = 6
RING = SLOT * NS

S_A, S_B, S_K, S_V, S_H, S_O, S_P = 4, 8, 12, 16, 20, 24, 84
sOffA, sOffB, sInc, sM0, sDcnt, sDelta, sRcnt, sCnt, sH, sHead, sRb, sHend, sT0, sT1 = range(28, 42)
sWrap, sStep = 42, 43
sHsz, sPf, sPf2, sPfM0 = 88, 89, 90, 91

vQ, vS, vP, vNM, vL, vT = 0, 96, 128, 160, 176, 180
vA, vB = 192, 195
vR = 198
vV = 200
vH = 204
vKs, vVs = 208, 211
vKr = 214
vPf = 216
vLane, vX = vLANE, 218
aK, aV = 192, 224

LEAD = 16
DELTA_M = 40.0


def acc(dt, qg):
    return ((qg * 6 + (dt >> 1)) * 2 + (dt & 1)) * 4


def Qf(qg, ks):
    return vQ + (qg * 6 + ks) * 4


def Sr(t, qg):
    return vS + (t * 4 + qg) * 4


def Pr(par, qg):
    return vP + par * 16 + qg * 4


def Or(dt, qg):
    return (dt * 4 + qg) * 4


def dma(vreg, srd_, soff, piece, stage):
    return I(f'buffer_load_dwordx4 v{vreg + piece}, s[{srd_}:{srd_ + 3}], s{soff} offen offset:{piece * 1024} lds' if piece else
             f'buffer_load_dwordx4 v{vreg}, s[{srd_}:{srd_ + 3}], s{soff} offen lds', tag=('dma', stage))


def need_stage(st):
    return lambda op: op.tag is not None and op.tag[0] == 'dma' and op.tag[1] <= st


def adv_chain(cnt, out, wrapval, stepval):
    return [f's_add_u32 s{cnt}, s{cnt}, 1',
            f's_cmp_eq_u32 s{cnt}, {NS}',
            f's_cselect_b32 s{out}, s{sWrap}, s{sStep}',
            f's_cselect_b32 s{cnt}, 0, s{cnt}']


def m0_advance():
    return adv_chain(sDcnt, sT0, -(RING - SLOT), SLOT) + [f's_add_u32 s{sM0}, s{sM0}, s{sT0}']


def place_chain(seg, chain, lo, hi):
    g = lo
    for c in chain:
        g = seg.find(g, hi, 'pre')
        if g is None:
            raise RuntimeError('no room for salu chain')
        seg.put(g, 'pre', c)
        g += 1
    return g


def c_setup_w(p):
    p.e(f's_and_b32 s{sT0}, s2, 7')
    p.e(f's_lshl_b32 s{sT0}, s{sT0}, 2')
    p.e(f's_bfe_u32 s{sT1}, s2, 0x20003')
    p.e(f's_add_u32 s{sHead}, s{sT0}, s{sT1}')
    p.e(f's_lshr_b32 s{sRb}, s2, 5')
    x0, x1, x2, x3, x4, x5 = (vX + k for k in range(6))
    p.e(f's_mul_i32 s{sT0}, s{sW}, 192')
    p.e(f's_movk_i32 s{sT1}, 2731')
    for pc in range(3):
        p.e(f'v_add_u32 v{x0}, s{sT0}, v{vLane}')
        if pc:
            p.e(f'v_add_u32 v{x0}, {64 * pc}, v{x0}')
        p.e(f'v_mul_u32_u24 v{x1}, s{sT1}, v{x0}')
        p.e(f'v_lshrrev_b32 v{x1}, 16, v{x1}')
        p.e(f'v_mul_u32_u24 v{x2}, 24, v{x1}')
        p.e(f'v_sub_u32 v{x2}, v{x0}, v{x2}')
        p.e(f'v_and_b32 v{x3}, 24, v{x2}')
        p.e(f'v_and_b32 v{x2}, 7, v{x2}')
        p.e(f'v_and_b32 v{x4}, 2, v{x1}')
        p.e(f'v_lshlrev_b32 v{x4}, 1, v{x4}')
        p.e(f'v_xor_b32 v{x4}, v{x4}, v{x2}')
        p.e(f'v_or_b32 v{x4}, v{x4}, v{x3}')
        p.e(f'v_lshlrev_b32 v{x4}, 4, v{x4}')
        p.e(f'v_mul_u32_u24 v{x5}, 0x3000, v{x1}')
        p.e(f'v_add_u32 v{x4}, v{x4}, v{x5}')
        if pc:
            p.e(f'v_subrev_u32 v{x4}, {1024 * pc}, v{x4}')
        p.e(f'v_mov_b32 v{vA + pc}, v{x4}')
        p.e(f'v_mov_b32 v{vB + pc}, v{x4}')
        p.e(f'v_mul_u32_u24 v{x5}, 0x180, v{x1}')
        p.e(f'v_add_u32 v{x5}, {2048 - 1024 * pc}, v{x5}')
        p.e(f'v_bfe_u32 v{x4}, v{x1}, 1, 3')
        p.e(f'v_xor_b32 v{x4}, v{x4}, v{x2}')
        p.e(f'v_or_b32 v{x4}, v{x4}, v{x3}')
        p.e(f'v_lshl_add_u32 v{vKs + pc}, v{x4}, 4, v{x5}')
        p.e(f'v_and_b32 v{x4}, 6, v{x1}')
        p.e(f'v_xor_b32 v{x4}, v{x4}, v{x2}')
        p.e(f'v_or_b32 v{x4}, v{x4}, v{x3}')
        p.e(f'v_lshl_add_u32 v{vVs + pc}, v{x4}, 4, v{x5}')
    for qg in range(4):
        p.e(f'v_lshlrev_b32 v{vH + qg}, 4, v{vLane}')
        if qg:
            p.e(f'v_add_u32 v{vH + qg}, {qg * 20480}, v{vH + qg}')
    srd(p, S_A, PTR['wq'], SZ_WQ)
    srd(p, S_B, PTR['wq'], SZ_WQ)
    p.e(f's_mul_i32 s{sOffA}, s{sHead}, 384')
    p.e(f's_add_u32 s{sOffB}, s{sOffA}, {32 * 12288}')
    p.e(f's_mov_b32 s{sInc}, {64 * 12288}')
    p.e(f's_mul_i32 s{sM0}, s{sW}, 3072')
    p.e(f's_mov_b32 s{sWrap}, {-(RING - SLOT)}')
    p.e(f's_mov_b32 s{sStep}, {SLOT}')
    p.e(f's_mov_b32 s{sDcnt}, 0')
    p.e(f's_mov_b32 s{sRcnt}, 0')


def c_setup_rest(p):
    srd(p, S_K, PTR['k'], SZ_KV)
    srd(p, S_V, PTR['v'], SZ_KV)
    p.e(f's_add_u32 s{sT0}, s{sHead}, 1')
    p.e(f's_mul_i32 s{S_K + 2}, s{sT0}, 786432')
    p.e(f's_mov_b32 s{S_V + 2}, s{S_K + 2}')
    srd(p, S_H, PTR['ws'], SZ_ACT, WS_H)
    srd(p, S_O, PTR['ws'], SZ_O, WS_O)
    p.e(f's_lshl_b32 s{sT0}, s{sRb}, 4')
    p.e(f's_lshl_b32 s{sT1}, s{sW}, 2')
    p.e(f's_add_u32 s{sT0}, s{sT0}, s{sT1}')
    p.e(f's_mul_i32 s{sH}, s{sT0}, 20480')
    p.e(f's_add_u32 s{sHend}, s{sH}, 20480')
    p.e(f's_mov_b32 s{sHsz}, {SZ_ACT}')
    srd(p, S_P, PTR['wo'], SZ_WO)
    p.e(f'v_lshlrev_b32 v{vPf}, 4, v{vLane}')
    p.e(f's_and_b32 s{sT0}, s2, 7')
    p.e(f's_mul_i32 s{sPf}, s{sT0}, 983040')
    p.e(f's_lshr_b32 s{sT0}, s2, 3')
    p.e(f's_lshl_b32 s{sT0}, s{sT0}, 2')
    p.e(f's_add_u32 s{sT0}, s{sT0}, s{sW}')
    p.e(f's_lshl_b32 s{sT0}, s{sT0}, 13')
    p.e(f's_add_u32 s{sPf}, s{sPf}, s{sT0}')
    p.e(f's_lshl_b32 s{sT0}, s2, 2')
    p.e(f's_add_u32 s{sT0}, s{sT0}, s{sW}')
    p.e(f's_lshl_b32 s{sPf2}, s{sT0}, 11')
    p.e(f's_lshl_b32 s{sPfM0}, s{sW}, 10')
    p.e(f's_add_u32 s{sPfM0}, s{sPfM0}, {LDS_PF}')


def c_stage_dma(p, st):
    p.e(f's_mov_b32 m0, s{sM0}')
    p.e('s_nop 0')
    for pc in range(3):
        p.e(dma(vA, S_A, sOffA, pc, st))
    p.e(f's_add_u32 m0, s{sM0}, 12288')
    p.e(f's_add_u32 s{sOffA}, s{sOffA}, s{sInc}')
    for pc in range(3):
        p.e(dma(vB, S_B, sOffB, pc, st))
    p.e(f's_add_u32 s{sOffB}, s{sOffB}, s{sInc}')
    p.e(m0_advance())


def c_issue_weights(p):
    for st in range(4):
        c_stage_dma(p, st)


def c_issue_h(p):
    for ks in range(3):
        for qg in range(4):
            p.e(f'buffer_load_dwordx4 {a((ks % 4) * 16 + qg * 4, 4)}, v{vH + qg}, s[{S_H}:{S_H + 3}], s{sH} offen{sc()}')
        p.e(f's_add_u32 s{sH}, s{sH}, 1024')


def c_issue_all(p):
    def hl(ks):
        for qg in range(4):
            p.e(f'buffer_load_dwordx4 {a((ks % 4) * 16 + qg * 4, 4)}, v{vH + qg}, s[{S_H}:{S_H + 3}], s{sH} offen{sc()}')
        p.e(f's_add_u32 s{sH}, s{sH}, 1024')
    hl(0)
    c_stage_dma(p, 0)
    hl(1)
    hl(2)
    for st in range(1, 4):
        c_stage_dma(p, st)


def c_read_addr(p):
    x0, x1, x2, x3, x4, x5 = (vX + k for k in range(6))
    lane = vLane
    p.e(f'v_and_b32 v{x0}, 15, v{lane}')
    p.e(f'v_lshrrev_b32 v{x1}, 4, v{lane}')
    p.e(f'v_lshrrev_b32 v{x2}, 2, v{x0}')
    p.e(f'v_lshl_add_u32 v{x2}, v{x1}, 3, v{x2}')
    p.e(f'v_mul_u32_u24 v{x2}, 0x180, v{x2}')
    p.e(f'v_and_b32 v{x3}, 3, v{x0}')
    p.e(f'v_and_b32 v{x4}, 8, v{x0}')
    p.e(f'v_lshrrev_b32 v{x4}, 1, v{x4}')
    for par in range(2):
        p.e(f'v_or_b32 v{x5}, {4 * par}, v{x3}')
        p.e(f'v_xor_b32 v{x5}, v{x5}, v{x4}')
        p.e(f'v_lshl_add_u32 v{vR + par}, v{x5}, 4, v{x2}')
    p.e(f'v_mul_u32_u24 v{x2}, 0x180, v{x0}')
    p.e(f'v_add_u32 v{x2}, {(10 % NS) * SLOT}, v{x2}')
    p.e(f'v_lshrrev_b32 v{x3}, 1, v{x0}')
    for par in range(2):
        p.e(f'v_or_b32 v{x5}, {4 * par}, v{x1}')
        p.e(f'v_xor_b32 v{x5}, v{x5}, v{x3}')
        p.e(f'v_lshl_add_u32 v{vKr + par}, v{x5}, 4, v{x2}')
    p.e(f'v_lshrrev_b32 v{x2}, 2, v{x0}')
    p.e(f'v_lshl_add_u32 v{x2}, v{x1}, 2, v{x2}')
    p.e(f'v_mul_u32_u24 v{x2}, 0x180, v{x2}')
    p.e(f'v_add_u32 v{x2}, {(11 % NS) * SLOT}, v{x2}')
    p.e(f'v_bfe_u32 v{x3}, v{x0}, 1, 1')
    p.e(f'v_lshl_add_u32 v{x2}, v{x3}, 4, v{x2}')
    p.e(f'v_and_b32 v{x3}, 1, v{x0}')
    p.e(f'v_lshl_add_u32 v{x2}, v{x3}, 3, v{x2}')
    p.e(f'v_and_b32 v{x3}, 1, v{x1}')
    p.e(f'v_lshlrev_b32 v{x3}, 1, v{x3}')
    p.e(f'v_lshrrev_b32 v{x4}, 3, v{x0}')
    p.e(f'v_or_b32 v{x3}, v{x3}, v{x4}')
    for q in range(4):
        p.e(f'v_xor_b32 v{x5}, {q}, v{x3}')
        p.e(f'v_lshl_add_u32 v{vV + q}, v{x5}, 5, v{x2}')


def c_zero(p):
    zero_v(p, 0, 192)
    for r in range(64, 192):
        p.e(f'v_accvgpr_write_b32 a{r}, 0')


def c_enter(p):
    p.e(wait_site(need=need_stage(0)))
    p.e('s_barrier')
    for n in range(4):
        for u in range(2):
            p.e(w_read(n, u))
    p.e(wait_site(lgkm=True))


def w_read(n, u):
    kk, dt = divmod(n % 48, 12)
    p6, t = dt >> 1, dt & 1
    off = (kk & 1) * 12288 + 1536 * u + 128 * (p6 >> 1) + 8 * t
    buf = aK + (n % 8) * 4 + 2 * u
    return I(f'ds_read_b64_tr_b16 {a(buf, 2)}, v{vR + (p6 & 1)} offset:{off}')


def phase1_body(it, Pn):
    mf = []
    for kk in range(4):
        for dt in range(12):
            n = 12 * kk + dt
            for qg in range(4):
                c = acc(dt, qg)
                mf.append(I(f'v_mfma_f32_16x16x32_bf16 {v(c, 4)}, {a(aK + (n % 8) * 4, 4)}, {a(kk * 16 + qg * 4, 4)}, {v(c, 4)}'))
    seg = Seg(mf)
    N = seg.n
    for n in range(48):
        for u in range(2):
            seg.put(4 * n - LEAD + 2 * u, 'ds', w_read(n, u))
    for n in range(48):
        first_k = (n % 12 == 0)
        seg.put(4 * n - 1, 'pre', wait_site(lgkm=True, vm=first_k))
    for kk in range(4):
        base = 48 * kk
        hb = ((kk + 3) % 4) * 16
        for qg in range(4):
            seg.put(base + 1 + 4 * qg, 'vm', I(f'buffer_load_dwordx4 {a(hb + qg * 4, 4)}, v{vH + qg}, s[{S_H}:{S_H + 3}], s{sH} offen{sc()}'))
        st = 2 * it + (kk >> 1) + 4
        for pc in range(3):
            if kk & 1:
                seg.put(base + 21 + 8 * pc, 'vm', dma(vB, S_B, sOffB, pc, st))
            else:
                seg.put(base + 21 + 8 * pc, 'vm', dma(vA, S_A, sOffA, pc, st))
    for h in range(2):
        b = 96 * h
        st = 2 * it + h
        seg.put(b + 14, 'pre', f's_mov_b32 m0, s{sM0}')
        hch = [f's_add_u32 s{sH}, s{sH}, 1024', f's_cmp_lt_u32 s{sH}, s{sHend}', f's_cselect_b32 s{S_H + 2}, s{sHsz}, 0']
        place_chain(seg, hch, b + 16, b + 38)
        seg.put(b + 40, 'pre', f's_add_u32 s{sOffA}, s{sOffA}, s{sInc}')
        place_chain(seg, adv_chain(sRcnt, sDelta, -(RING - SLOT), SLOT), b + 42, b + 60)
        seg.put(b + 62, 'pre', f's_add_u32 m0, s{sM0}, 12288')
        place_chain(seg, hch, b + 64, b + 75)
        seg.put(b + 72, 'valu', f'v_add_u32 v{vR}, s{sDelta}, v{vR}')
        seg.put(b + 80, 'valu', f'v_add_u32 v{vR + 1}, s{sDelta}, v{vR + 1}')
        seg.put(b + 76, 'pre', wait_site(need=need_stage(st + 1)))
        seg.put(b + 78, 'pre', 's_barrier')
        seg.put(b + 86, 'pre', f's_add_u32 s{sOffB}, s{sOffB}, s{sInc}')
        ch = m0_advance()
        if h == 0:
            place_chain(seg, ch, b + 88, b + 108)
        else:
            tail = ch
    out = [I(f'{Pn}_p1:')]
    out += seg.emit()
    out += [I(c) for c in tail]
    out.append(I(f's_sub_u32 s{sCnt}, s{sCnt}, 1'))
    out.append(I(f's_cmp_eq_u32 s{sCnt}, 2'))
    out.append(I(f's_cbranch_scc0 {Pn}_p1_nosw'))
    fix = []
    for k in range(4):
        fix.append(I(f's_mov_b32 s{S_A + k}, s{S_K + k}'))
        fix.append(I(f's_mov_b32 s{S_B + k}, s{S_V + k}'))
    fix.append(I(f's_mul_i32 s{sOffA}, s{sHead}, 786432'))
    fix.append(I(f's_add_u32 s{sOffA}, s{sOffA}, {589824 - 2048}'))
    fix.append(I(f's_sub_u32 s{sOffB}, s{sOffA}, 12288'))
    fix.append(I(f's_mov_b32 s{sInc}, 12288'))
    for k in range(3):
        fix.append(I(f'v_mov_b32 v{vA + k}, v{vKs + k}'))
        fix.append(I(f'v_mov_b32 v{vB + k}, v{vVs + k}'))
    if it != 2:
        skip(fix)
    out += fix
    out.append(I(f'{Pn}_p1_nosw:'))
    out.append(I(f's_cmp_lg_u32 s{sCnt}, 0'))
    out.append(I(f's_cbranch_scc1 {Pn}_p1'))
    return out


def k_read(cnt, n):
    t, ks = divmod(n, 6)
    off = 6144 * t + 128 * (ks >> 1)
    return I(f'ds_read_b128 {a(aK + (cnt % 8) * 4, 4)}, v{vR + (ks & 1)} offset:{off}')


def v_read(cnt, dt, u):
    off = 12288 + 6144 * u + 128 * (dt >> 2)
    return I(f'ds_read_b64_tr_b16 {a(aV + (cnt % 8) * 4 + 2 * u, 2)}, v{vV + (dt & 3)} offset:{off}')


def qk_mfmas(par, first_zero=False):
    mf = []
    for n in range(12):
        t, ks = divmod(n, 6)
        for qg in range(4):
            c = '0' if (ks == 0 and first_zero) else (v(vNM + 4 * qg, 4) if ks == 0 else v(Sr(t, qg), 4))
            mf.append(I(f'v_mfma_f32_16x16x32_bf16 {v(Sr(t, qg), 4)}, {a(aK + ((12 * par + n) % 8) * 4, 4)}, {v(Qf(qg, ks), 4)}, {c}'))
    return mf


def pv_mfmas(par):
    mf = []
    for dt in range(12):
        for qg in range(4):
            mf.append(I(f'v_mfma_f32_16x16x32_bf16 {a(Or(dt, qg), 4)}, {a(aV + ((12 * par + dt) % 8) * 4, 4)}, {v(Pr(par, qg), 4)}, {a(Or(dt, qg), 4)}'))
    return mf


def sm_op(kind, t, qg, r, par):
    sr = Sr(t, qg)
    if kind == 'exp':
        return I(f'v_exp_f32 v{sr + r}, v{sr + r}')
    if kind == 'add':
        return I(f'v_add_f32 v{vL + qg}, v{sr + r}, v{vL + qg}')
    return I(f'v_cvt_pk_bf16_f32 v{Pr(par, qg) + 2 * t + r}, v{sr + 2 * r}, v{sr + 2 * r + 1}')


DGAPS = [1, 9, 17, 25, 33, 41]


PFGAP = 49


def att_fixed(seg, par, j, last_k=True, pf=True):
    G = 11 + j
    npar = 1 - par
    for n in range(4, 12):
        seg.put(4 * n - LEAD, 'ds', k_read(12 * par + n, n))
    if last_k:
        for n in range(4):
            seg.put(96 + 4 * n - LEAD, 'ds', k_read(12 * npar + n, n))
    for dt in range(12):
        for u in range(2):
            seg.put(48 + 4 * dt - LEAD + 2 * u, 'ds', v_read(12 * par + dt, dt, u))
    for n in range(24):
        seg.put(4 * n - 1, 'pre', wait_site(lgkm=True))
    for k, g in enumerate(DGAPS):
        seg.put(g, 'vm', dma(vA, S_A, sOffA, k, G + 4) if k < 3 else dma(vB, S_B, sOffB, k - 3, G + 4))
    if pf:
        seg.put(PFGAP, 'vm', I(f'buffer_load_dwordx4 v{vPf}, s[{S_P}:{S_P + 3}], s{sPf} offen lds', tag=('pf', 0)))
    else:
        seg.gaps[PFGAP].vm = I('s_nop 0')
    seg.put(46, 'pre', f's_mov_b32 m0, s{sPfM0}')
    seg.put(94, 'pre', f's_mov_b32 m0, s{sM0}')
    g = place_chain(seg, [f's_add_u32 m0, s{sM0}, 12288'], DGAPS[2] + 1, DGAPS[3])
    g = place_chain(seg, [f's_add_u32 s{sOffA}, s{sOffA}, s{sInc}'] + adv_chain(sRcnt, sDelta, -(RING - SLOT), SLOT), 28, 44)
    g = place_chain(seg, [f's_add_u32 s{sOffB}, s{sOffB}, s{sInc}'] + m0_advance() + [f's_add_u32 s{sPf}, s{sPf}, 1024'],
                    max(g, PFGAP + 1), 74)
    seg.put(76, 'pre', wait_site(need=need_stage(G + 1)))
    seg.put(78, 'pre', 's_barrier')
    fixed = []
    fixed.append((48, 78, f'v_add_u32 v{vR}, s{sDelta}, v{vR}'))
    fixed.append((48, 78, f'v_add_u32 v{vR + 1}, s{sDelta}, v{vR + 1}'))
    for q in range(4):
        last = 48 + 4 * (8 + q) - LEAD + 2
        fixed.append((last, 95, f'v_add_u32 v{vV + q}, s{sDelta}, v{vV + q}'))
    return fixed


def sm_schedule():
    seg = Seg(qk_mfmas(0) + pv_mfmas(0))
    fixed = att_fixed(seg, 0, 0)
    placed = []
    fixed_at = []
    for lo, hi, txt in fixed:
        g = seg.place(lo, hi, 'valu', I(txt))
        fixed_at.append(g)
    order = [(t, qg) for t in range(2) for qg in range(4)]
    expg = {}
    cur = 0
    for (t, qg) in order:
        ready = 24 * t + 20 + qg + 8
        dead = 96 + 24 * t + qg
        for r in range(4):
            lo = max(ready, cur)
            g = seg.find(lo, dead - 2, 'exp')
            if g is None:
                raise RuntimeError('exp placement failed')
            seg.put(g, 'exp', I('v_exp_f32 v0, v0'))
            expg[(t, qg, r)] = g
            placed.append((g, 'exp', 'exp', t, qg, r))
            cur = g + 1
    items = []
    for (t, qg) in order:
        dead = 96 + 24 * t + qg
        for r in range(4):
            items.append((dead, expg[(t, qg, r)] + 1, 'add', t, qg, r))
        for r in range(2):
            items.append((dead, max(expg[(t, qg, 2 * r)], expg[(t, qg, 2 * r + 1)]) + 1, 'cvt', t, qg, r))
    items.sort(key=lambda x: (x[0], x[1]))
    for dead, lo, kind, t, qg, r in items:
        g = None
        for gg in range(lo, dead):
            gp = seg.gaps[gg % 96]
            if gp.ds is not None and gp.can('valu'):
                g = gg
                break
        if g is None or g > lo + 14:
            g2 = seg.find(lo, dead, 'valu')
            if g2 is not None and (g is None or g2 < g):
                g = g2
        if g is None:
            raise RuntimeError('valu placement failed')
        seg.put(g, 'valu', I('v_add_f32 v0, v0, v0'))
        placed.append((g, 'valu', kind, t, qg, r))
    return placed, fixed_at


SM_PLACED, SM_FIXED = None, None


def att_last(p):
    par = 1
    rest = sorted([x for x in SM_PLACED if x[0] >= 96], key=lambda x: x[0])
    for dt in range(4):
        for u in range(2):
            p.e(v_read(12 * par + dt, dt, u))
    for (g, cls, kind, t, qg, r) in rest:
        p.e(sm_op(kind, t, qg, r, par))
    p.e(wait_site(lgkm=True))
    seg = Seg(pv_mfmas(par))
    for dt in range(4, 12):
        for u in range(2):
            seg.put(4 * dt - LEAD + 2 * u, 'ds', v_read(12 * par + dt, dt, u))
    for n in range(1, 12):
        seg.put(4 * n - 1, 'pre', wait_site(lgkm=True))
    p.e(seg.emit())


def att_step(j):
    global SM_PLACED, SM_FIXED
    if SM_PLACED is None:
        SM_PLACED, SM_FIXED = sm_schedule()
    par = j & 1
    seg = Seg(qk_mfmas(par) + pv_mfmas(par))
    fixed = att_fixed(seg, par, j, last_k=(j != 14), pf=(j < 14))
    todo = [(g, 'valu', I(txt)) for g, (lo, hi, txt) in zip(SM_FIXED, fixed)]
    for (g, cls, kind, t, qg, r) in SM_PLACED:
        if g < 96:
            todo.append((g, cls, sm_op(kind, t, qg, r, 1 - par)))
        else:
            todo.append((g - 96, cls, sm_op(kind, t, qg, r, par)))
    for g, cls, ins in todo:
        seg.put(g, cls, ins)
    return seg


def att_body(it, Pn):
    out = [I(f'{Pn}_att:')]
    out += att_step(2 * it).emit()
    seg = att_step(2 * it + 1)
    out += seg.emit()
    out.append(I(f's_sub_u32 s{sCnt}, s{sCnt}, 1'))
    out.append(I(f's_cmp_le_u32 s{sCnt}, 3'))
    out.append(I(f's_cselect_b32 s{S_P + 2}, 0, s{S_P + 2}'))
    out.append(I(f's_cmp_lg_u32 s{sCnt}, 0'))
    out.append(I(f's_cbranch_scc1 {Pn}_att'))
    return out


def xlane_reduce(p, reg, tmp, op):
    for sw in ('v_permlane32_swap_b32', 'v_permlane16_swap_b32'):
        p.e(f'v_mov_b32 v{tmp}, v{reg}')
        p.e('s_nop 1')
        p.e(f'{sw} v{tmp}, v{reg}')
        p.e(f'{op} v{reg}, v{tmp}, v{reg}')


def transition(p, Pn):
    global SM_PLACED, SM_FIXED
    if SM_PLACED is None:
        SM_PLACED, SM_FIXED = sm_schedule()
    G = 10
    p.e(wait_site(vm=True))
    p.e('s_nop 7')
    for qg in range(4):
        for ks in range(6):
            d = Qf(qg, ks)
            c0, c1 = acc(2 * ks, qg), acc(2 * ks + 1, qg)
            p.e(f'v_cvt_pk_bf16_f32 v{d}, v{c0}, v{c0 + 1}')
            p.e(f'v_cvt_pk_bf16_f32 v{d + 1}, v{c0 + 2}, v{c0 + 3}')
            p.e(f'v_cvt_pk_bf16_f32 v{d + 2}, v{c1}, v{c1 + 1}')
            p.e(f'v_cvt_pk_bf16_f32 v{d + 3}, v{c1 + 2}, v{c1 + 3}')
    p.e(f'v_mov_b32 v{vR}, v{vKr}')
    p.e(f'v_mov_b32 v{vR + 1}, v{vKr + 1}')
    p.e(wait_site(lgkm=True))
    for n in range(4):
        p.e(k_read(12 + n, n))
    p.e(wait_site(lgkm=True))
    seg = Seg(qk_mfmas(1, first_zero=True))
    for n in range(4, 12):
        seg.put(4 * n - LEAD, 'ds', k_read(12 + n, n))
    for n in range(1, 12):
        seg.put(4 * n - 1, 'pre', wait_site(lgkm=True))
    for k, g in enumerate([1, 5, 9, 13, 17, 21]):
        seg.put(g, 'vm', dma(vA, S_A, sOffA, k, G + 4) if k < 3 else dma(vB, S_B, sOffB, k - 3, G + 4))
    zs = [I(f'v_accvgpr_write_b32 a{r}, 0') for r in range(64)]
    g = 0
    for z in zs:
        g = seg.find(g, 48, 'valu')
        seg.put(g, 'valu', z)
    p.e(f's_mov_b32 m0, s{sM0}')
    seg.put(10, 'pre', f's_add_u32 m0, s{sM0}, 12288')
    g = place_chain(seg, [f's_add_u32 s{sOffA}, s{sOffA}, s{sInc}'] + adv_chain(sRcnt, sDelta, -(RING - SLOT), SLOT), 12, 30)
    g = place_chain(seg, [f's_add_u32 s{sOffB}, s{sOffB}, s{sInc}'] + m0_advance(), max(g, 22), 47)
    p.e(seg.emit())
    p.e(f'v_add_u32 v{vR}, s{sDelta}, v{vR}')
    p.e(f'v_add_u32 v{vR + 1}, s{sDelta}, v{vR + 1}')
    p.e(f's_mov_b32 m0, s{sM0}')
    p.e(wait_site(need=need_stage(G + 1)))
    p.e('s_barrier')
    for n in range(4):
        p.e(k_read(n, n))
    p.e('s_nop 2')
    for qg in range(4):
        s0, s1, m = Sr(0, qg), Sr(1, qg), vT + qg
        p.e(f'v_max3_f32 v{m}, v{s0}, v{s0 + 1}, v{s0 + 2}')
        p.e(f'v_max3_f32 v{m}, v{m}, v{s0 + 3}, v{s1}')
        p.e(f'v_max3_f32 v{m}, v{m}, v{s1 + 1}, v{s1 + 2}')
        p.e(f'v_max_f32 v{m}, v{m}, v{s1 + 3}')
    for qg in range(4):
        xlane_reduce(p, vT + qg, vT + 4, 'v_max_f32')
    p.e(f's_mov_b32 s{sT0}, {float_bits(-DELTA_M):#x}')
    for qg in range(4):
        p.e(f'v_sub_f32 v{vNM + 4 * qg}, s{sT0}, v{vT + qg}')
        for r in range(1, 4):
            p.e(f'v_mov_b32 v{vNM + 4 * qg + r}, v{vNM + 4 * qg}')
        p.e(f'v_mov_b32 v{vL + qg}, 0')
    for t in range(2):
        for qg in range(4):
            for r in range(4):
                p.e(f'v_add_f32 v{Sr(t, qg) + r}, v{vNM + 4 * qg}, v{Sr(t, qg) + r}')
    pre = sorted([x for x in SM_PLACED if x[0] < 96], key=lambda x: (x[0], x[1] != 'exp'))
    exps = [x for x in pre if x[2] == 'exp']
    rest = [x for x in pre if x[2] != 'exp']
    for (g, cls, kind, t, qg, r) in exps:
        p.e(sm_op(kind, t, qg, r, 0))
    p.e('s_nop 0')
    for (g, cls, kind, t, qg, r) in rest:
        p.e(sm_op(kind, t, qg, r, 0))
    p.e(wait_site(lgkm=True))


def float_bits(x):
    import struct
    return struct.unpack('<I', struct.pack('<f', x))[0]


def epilogue(p, Pn, feed=None):
    feed = feed or Feed()
    p.e('s_nop 7')
    for qg in range(4):
        xlane_reduce(p, vL + qg, vT + 4, 'v_add_f32')
    for qg in range(4):
        p.e(f'v_rcp_f32 v{vL + qg}, v{vL + qg}')
    p.e(f'v_lshlrev_b32 v{vX}, 4, v{vLane}')
    p.e(f's_lshl_b32 s{sT0}, s{sRb}, 4')
    p.e(f's_lshl_b32 s{sT1}, s{sW}, 2')
    p.e(f's_add_u32 s{sT0}, s{sT0}, s{sT1}')
    p.e(f's_mul_i32 s{sT0}, s{sT0}, 192')
    p.e(f's_mul_i32 s{sT1}, s{sHead}, 6')
    p.e(f's_add_u32 s{sT0}, s{sT0}, s{sT1}')
    p.e(f's_lshl_b32 s{sT0}, s{sT0}, 10')
    k = 0
    for qg in range(4):
        for pp in range(6):
            tb = vS + (k % 3) * 12
            k += 1
            for h in range(2):
                for r in range(4):
                    p.e(f'v_accvgpr_read_b32 v{tb + 4 * h + r}, a{Or(2 * pp + h, qg) + r}')
            for r in range(0, 8, 2):
                p.e(f'v_pk_mul_f32 {v(tb + r, 2)}, {v(tb + r, 2)}, {v(vL + (qg & ~1), 2)} op_sel:[0,{qg & 1}] op_sel_hi:[1,{qg & 1}]')
            for r in range(4):
                p.e(f'v_cvt_pk_bf16_f32 v{tb + 8 + r}, v{tb + 2 * r}, v{tb + 2 * r + 1}')
            if pp == 4:
                p.e(f's_add_u32 s{sT0}, s{sT0}, 4096')
            off = (pp % 4) * 1024
            p.e(f'buffer_store_dwordx4 {v(tb + 8, 4)}, v{vX}, s[{S_O}:{S_O + 3}], s{sT0} offen' + (f' offset:{off}' if off else '') + sc_o_store())
            feed.emit(p)
        p.e(f's_add_u32 s{sT0}, s{sT0}, {192 * 1024 - 4096}')
    feed.flush(p)


def c_main(p, Pn):
    c_enter(p)
    mk(p, 'c_enter')
    p.e(f's_mov_b32 s{sCnt}, 5')
    p.loop([phase1_body(it, Pn) for it in range(5)])
    mk(p, 'c_p1')
    transition(p, Pn)
    mk(p, 'c_trans')
    p.e(f's_mov_b32 s{sCnt}, 7')
    p.loop([att_body(it, Pn) for it in range(7)])
    p.e(att_step(14).emit())
    att_last(p)
    mk(p, 'c_att')
```

```python
from common import *
import gen_c, gen_small, gen_gemm
from gen_small import PhaseB, PhaseE
from gen_gemm import PhaseD, PhaseF, PhaseG


def off_line_word(line_fn, word_fn):
    def f(p):
        line_fn(p)
        p.e(f's_lshl_b32 s{sSy0}, s{sSy0}, 7')
        word_fn(p)
    return f


def gen_k1(name='main_kernel'):
    p = Prog()
    p.e(kernel_head(name))
    rt_begin(p)
    p.e('s_cmp_ge_u32 s2, 256')
    p.e(f's_cbranch_scc1 {name}_end')
    load_ptrs(p, ['x', 'ws', 'wq', 'k', 'v', 'wo', 'w1', 'w3', 'w2', 'out'])
    lane_wave(p)
    B, D, E, F, G = PhaseB(), PhaseD(name + '_d'), PhaseE(), PhaseF(name + '_f'), PhaseG(name + '_g')
    T = gen_c.sT1

    B.setup(p)
    p.e('s_waitcnt lgkmcnt(0)')
    B.srds(p)
    mk(p, 'b_start')

    def c_early(q):
        gen_c.c_setup_w(q)
        gen_c.c_issue_weights(q)
    B.body(p, c_early)
    mk(p, 'b_body')

    def fb_sig(q):
        q.e(f's_lshr_b32 s{sSy0}, s2, 5')
        q.e(f's_add_u32 s{sSy0}, s{sSy0}, {FL_B}')
        q.e(f's_lshl_b32 s{sSy0}, s{sSy0}, 7')
        q.e(f's_and_b32 s{sSy1}, s2, 31')
        q.e(f's_lshl_b32 s{sSy1}, s{sSy1}, 2')
        q.e(f's_add_u32 s{sSy0}, s{sSy0}, s{sSy1}')
    mk(p, 'b_done')
    signal(p, name + '_sb', fb_sig, 'b')
    gen_c.c_setup_rest(p)
    gen_c.c_read_addr(p)
    gen_c.c_zero(p)
    D.dma_addr(p)
    F.dma_addr(p)
    G.dma_addr(p)

    def fb_wait(q):
        q.e(f's_lshr_b32 s{sSy0}, s2, 5')
        q.e(f's_add_u32 s{sSy0}, s{sSy0}, {FL_B}')
        q.e(f's_lshl_b32 s{sSy0}, s{sSy0}, 7')
    await_flags(p, name + '_wb', fb_wait, 32)
    mk(p, 'b_polled')
    gen_c.c_issue_h(p)
    gen_c.c_main(p, name + '_c')
    p.e('s_waitcnt lgkmcnt(0)')
    p.e('s_barrier')
    mk(p, 'c_main')
    gen_c.epilogue(p, name + '_c', D.early(p))
    mk(p, 'c_epi')

    def fc_sig(q):
        q.e(f's_add_u32 s{sSy0}, s{gen_c.sRb}, {FL_C}')
        q.e(f's_lshl_b32 s{sSy0}, s{sSy0}, 7')
        q.e(f's_lshl_b32 s{sSy1}, s{gen_c.sHead}, 2')
        q.e(f's_add_u32 s{sSy0}, s{sSy0}, s{sSy1}')
    signal(p, name + '_sc', fc_sig, 'c')
    D.setup(p)
    D.issue_w(p, issue=False)
    D.zero(p)

    def fc_wait(q):
        q.e(f's_add_u32 s{sSy0}, s{D.sRb}, {FL_C}')
        q.e(f's_lshl_b32 s{sSy0}, s{sSy0}, 7')
        q.e(f's_lshl_b32 s{sSy1}, s{D.sSp}, 4')
        q.e(f's_add_u32 s{sSy0}, s{sSy0}, s{sSy1}')
    await_flags(p, name + '_wc', fc_wait, 4)
    mk(p, 'c_polled')
    D.issue_b(p)
    D_main(p, D)
    p.e('s_waitcnt lgkmcnt(0)')
    p.e('s_barrier')
    mk(p, 'd_main')
    D.epilogue(p, F.early(p))
    mk(p, 'd_epi')

    def fd_sig(q):
        q.e(f's_add_u32 s{sSy0}, s{D.sRb}, {FL_D}')
        q.e(f's_lshl_b32 s{sSy0}, s{sSy0}, 7')
        q.e(f's_lshl_b32 s{sSy1}, s{D.sSp}, 2')
        q.e(f's_add_u32 s{sSy1}, s{sSy1}, s{D.sNt}')
        q.e(f's_lshl_b32 s{sSy1}, s{sSy1}, 2')
        q.e(f's_add_u32 s{sSy0}, s{sSy0}, s{sSy1}')
    signal(p, name + '_sd', fd_sig, 'd')
    E.setup(p)

    def fd_wait(q):
        q.e(f's_lshr_b32 s{sSy0}, s2, 5')
        q.e(f's_add_u32 s{sSy0}, s{sSy0}, {FL_D}')
        q.e(f's_lshl_b32 s{sSy0}, s{sSy0}, 7')
    await_flags(p, name + '_wd', fd_wait, 32, None if OPT['quiet'] else E.early_loads)
    mk(p, 'd_polled')
    E.body(p, late=OPT['quiet'])
    mk(p, 'e_body')

    def fe_sig(q):
        q.e(f's_lshr_b32 s{sSy0}, s2, 4')
        q.e(f's_add_u32 s{sSy0}, s{sSy0}, {FL_E}')
        q.e(f's_lshl_b32 s{sSy0}, s{sSy0}, 7')
        q.e(f's_and_b32 s{sSy1}, s2, 15')
        q.e(f's_lshl_b32 s{sSy1}, s{sSy1}, 2')
        q.e(f's_add_u32 s{sSy0}, s{sSy0}, s{sSy1}')
    signal(p, name + '_se', fe_sig, 'e')
    F.setup(p)
    F.zero(p)

    def fe_wait(q):
        q.e(f's_add_u32 s{sSy0}, s{F.sRb}, {FL_E}')
        q.e(f's_lshl_b32 s{sSy0}, s{sSy0}, 7')
    await_flags(p, name + '_we', fe_wait, 16)
    mk(p, 'e_polled')
    F.issue_b(p)
    F.main(p)
    p.e('s_waitcnt lgkmcnt(0)')
    p.e('s_barrier')
    mk(p, 'f_main')
    F.epilogue(p, G.early(p))
    mk(p, 'f_epi')

    def ff_sig(q):
        q.e(f's_add_u32 s{sSy0}, s{F.sRb}, {FL_F}')
        q.e(f's_lshl_b32 s{sSy0}, s{sSy0}, 7')
        q.e(f's_lshl_b32 s{sSy1}, s{F.sFb}, 2')
        q.e(f's_add_u32 s{sSy0}, s{sSy0}, s{sSy1}')
    signal(p, name + '_sf', ff_sig, 'f')
    G.setup(p)
    G.zero(p)

    def ff_wait(q):
        q.e(f's_lshr_b32 s{sSy0}, s{G.sRb}, 1')
        q.e(f's_add_u32 s{sSy0}, s{sSy0}, {FL_F}')
        q.e(f's_lshl_b32 s{sSy0}, s{sSy0}, 7')
    await_flags(p, name + '_wf', ff_wait, 16)
    mk(p, 'f_polled')
    G.issue_late(p)
    G.main(p)
    mk(p, 'g_main')
    G.epilogue(p)
    mk(p, 'g_epi')
    p.e('s_waitcnt vmcnt(0)')
    rt_end(p, 1)
    p.e(f'{name}_end:')
    p.e('s_endpgm')
    p.resolve()
    return p, p.verify()


def D_main(p, D):
    D.main(p)


if __name__ == '__main__':
    p, errs = gen_k1()
    print(len(p.static()), 'static', len(p.trace()), 'dynamic', len(errs), 'errors')
    for e in errs[:30]:
        print('  ', e)
    open('k1.s', 'w').write(p.text())
```

```python
from common import *
from gen_small import fbits, LOG2E

LEAD = 16
aA = 192
aB = 0


def magic(div, limit):
    m = (65536 + div - 1) // div
    assert all((x * m) >> 16 == x // div for x in range(limit)), (div, limit)
    return m


def dma(vreg, srd_, soff, imm, stage):
    o = f' offset:{imm}' if imm else ''
    return I(f'buffer_load_dwordx4 v{vreg}, s[{srd_}:{srd_ + 3}], s{soff} offen{o} lds', tag=('dma', stage))


def need_stage(st):
    return lambda op: op.tag is not None and op.tag[0] == 'dma' and op.tag[1] <= st


def place_chain(seg, chain, lo, hi):
    g = lo
    for c in chain:
        g = seg.find(g, hi, 'pre')
        if g is None:
            raise RuntimeError('no room for salu chain: ' + str(c))
        seg.put(g, 'pre', c)
        g += 1
    return g


def wave_id(p, sW, tmp):
    p.e(f'v_lshrrev_b32 v{tmp}, 6, v0')
    p.e('s_nop 0')
    p.e(f'v_readfirstlane_b32 s{sW}, v{tmp}')


def piece_voff(p, dst, lane, sWaveBase, pc_global_add, gran_per_row, row_pitch, swz, comp, T):
    x0, x1, x2, x3 = T, T + 1, T + 2, T + 3
    if sWaveBase is not None:
        p.e(f'v_add_u32 v{x0}, s{sWaveBase}, v{lane}')
    else:
        p.e(f'v_mov_b32 v{x0}, v{lane}')
    if pc_global_add:
        p.e(f'v_add_u32 v{x0}, {pc_global_add}, v{x0}')
    p.e(f'v_mul_u32_u24 v{x1}, {magic(gran_per_row, 1300)}, v{x0}')
    p.e(f'v_lshrrev_b32 v{x1}, 16, v{x1}')
    p.e(f'v_mul_u32_u24 v{x2}, {gran_per_row}, v{x1}')
    p.e(f'v_sub_u32 v{x2}, v{x0}, v{x2}')
    if swz == 'b2':
        p.e(f'v_lshrrev_b32 v{x3}, 1, v{x1}')
        p.e(f'v_and_b32 v{x3}, 2, v{x3}')
        p.e(f'v_xor_b32 v{x2}, v{x3}, v{x2}')
    p.e(f'v_mul_u32_u24 v{x1}, {row_pitch}, v{x1}')
    p.e(f'v_lshl_add_u32 v{dst}, v{x2}, 4, v{x1}')
    if comp:
        p.e(f'v_subrev_u32 v{dst}, {comp}, v{dst}')


def lane_parts(p, lane, vi, vg):
    p.e(f'v_and_b32 v{vi}, 15, v{lane}')
    p.e(f'v_lshrrev_b32 v{vg}, 4, v{lane}')


def sigma_base(p, dst, vi, vg, rowbytes, T):
    p.e(f'v_lshrrev_b32 v{T}, 2, v{vi}')
    p.e(f'v_lshl_add_u32 v{T}, v{vg}, 2, v{T}')
    p.e(f'v_mul_u32_u24 v{dst}, {rowbytes}, v{T}')
    p.e(f'v_bfe_u32 v{T}, v{vi}, 1, 1')
    p.e(f'v_lshl_add_u32 v{dst}, v{T}, 4, v{dst}')
    p.e(f'v_and_b32 v{T}, 1, v{vi}')
    p.e(f'v_lshl_add_u32 v{dst}, v{T}, 3, v{dst}')


class Ring:
    def __init__(self, slot, ns, sM0, sDcnt, sDelta, sRcnt, sT, sWrap, sStep):
        self.slot, self.ns = slot, ns
        self.sM0, self.sDcnt, self.sDelta, self.sRcnt, self.sT, self.sWrap, self.sStep = sM0, sDcnt, sDelta, sRcnt, sT, sWrap, sStep

    def init(self, p):
        p.e(f's_mov_b32 s{self.sWrap}, {-(self.slot * (self.ns - 1))}')
        p.e(f's_mov_b32 s{self.sStep}, {self.slot}')
        p.e(f's_mov_b32 s{self.sDcnt}, 0')
        p.e(f's_mov_b32 s{self.sRcnt}, 0')

    def adv(self, cnt, out):
        return [f's_add_u32 s{cnt}, s{cnt}, 1',
                f's_cmp_eq_u32 s{cnt}, {self.ns}',
                f's_cselect_b32 s{out}, s{self.sWrap}, s{self.sStep}',
                f's_cselect_b32 s{cnt}, 0, s{cnt}']

    def read_adv(self):
        return self.adv(self.sRcnt, self.sDelta)

    def m0_adv(self):
        return self.adv(self.sDcnt, self.sT) + [f's_add_u32 s{self.sM0}, s{self.sM0}, s{self.sT}']


def gemm_body(it, Pn, cfg):
    nA, U, RA = cfg['nA'], cfg['U'], cfg['RA']
    assert (nA * U) % RA == 0 and U % 2 == 0
    G = 4 * nA
    ring = cfg['ring']
    mf = []
    for kk in range(U):
        for an in range(nA):
            n = nA * kk + an
            for qg in range(4):
                c = cfg['acc'](an, qg)
                mf.append(I(f'v_mfma_f32_16x16x32_bf16 {v(c, 4)}, {a(aA + (n % RA) * 4, 4)}, {a(aB + kk * 16 + qg * 4, 4)}, {v(c, 4)}'))
    seg = Seg(mf)
    for n in range(U * nA):
        for u in range(2):
            seg.put(4 * n - LEAD + 2 * u, 'ds', cfg['a_read'](n, u))
    for n in range(U * nA):
        seg.put(4 * n - 2, 'pre', wait_site(lgkm=True, vm=(n % nA == 0)))
    vB, sB, S_B = cfg['vB'], cfg['sB'], cfg['S_B']
    sq = ScalarQueue(seg)
    advs = []
    nst = U // 2
    for h in range(nst):
        b = 2 * G * h
        st = nst * it + h
        odd = [g for g in range(b + 1, b + 2 * G, 2)]
        for kh in range(2):
            kk = 2 * h + kh
            hb = aB + ((kk + U - 1) % U) * 16
            for qg in range(4):
                g = b + kh * G + 1 + 2 * qg
                seg.put(g, 'vm', I(f'buffer_load_dwordx4 {a(hb + qg * 4, 4)}, v{vB + qg}, s[{S_B}:{S_B + 3}], s{sB} offen{cfg.get("scb", sc)()}'))
            sq.add(b + kh * G + 8, b + kh * G + G, [f's_add_u32 s{sB}, s{sB}, 1024', f's_cmp_lt_u32 s{sB}, s{cfg["sBend"]}',
                                                   f's_cselect_b32 s{S_B + 2}, s{cfg["sBsz"]}, 0'])
        target = st + ring.ns - 2
        groups = cfg['dma_groups']
        free = [g for g in odd if seg.can(g, 'vm')]
        npieces = sum(len(x[1]) for x in groups)
        lim = [g for g in free if g < b + 2 * G - cfg.get('tail', 10)]
        assert len(lim) >= npieces, (len(lim), npieces)
        step = len(lim) / npieces
        k = 0
        prev = b - 1
        for m0i, pieces, post in groups:
            gs = [lim[int((k + j) * step)] for j in range(len(pieces))]
            sq.add(max(prev + 1, gs[0] - cfg.get('m0lead', 6)), gs[0], [m0i])
            for (vr, sr, so, imm), g in zip(pieces, gs):
                seg.put(g, 'vm', dma(vr, sr, so, imm, target))
            prev = gs[-1]
            if post:
                sq.add(prev + 1, b + 2 * G + 2, post)
            k += len(pieces)
        first_next = b + 2 * G - LEAD
        seg.put(first_next - 8, 'pre', wait_site(need=need_stage(st + 1)))
        seg.put(first_next - 4, 'pre', 's_barrier')
        ra = cfg.get('radv', 12)
        sq.add(b + ra, first_next - 8, ring.read_adv())
        advs.append((b, first_next - 8))
        if h < nst - 1:
            sq.add(prev + 2, b + 2 * G + 8, ring.m0_adv())
        else:
            tail = ring.m0_adv()
    sq.place()
    for b, chain_end in advs:
        for reg, lastg, firstg in cfg['addr_adv'](b, G):
            g = None
            for gg in range(max(lastg, chain_end), firstg):
                if seg.gaps[gg % seg.n].ds is not None and seg.can(gg, 'valu'):
                    g = gg
                    break
            assert g is not None
            seg.put(g, 'valu', f'v_add_u32 v{reg}, s{ring.sDelta}, v{reg}')
    out = [I(f'{Pn}_loop:')]
    out += seg.emit()
    out += [I(c) for c in tail]
    sCnt = cfg['sCnt']
    out.append(I(f's_sub_u32 s{sCnt}, s{sCnt}, 1'))
    out.append(I(f's_cmp_lg_u32 s{sCnt}, 0'))
    out.append(I(f's_cbranch_scc1 {Pn}_loop'))
    return out


def gemm_issue_weights(p, cfg, issue=True):
    ring = cfg['ring']
    for st in range(ring.ns - 2):
        for m0i, pieces, post in cfg['dma_groups']:
            if issue:
                p.e(m0i)
                p.e('s_nop 0')
                for (vr, sr, so, imm) in pieces:
                    p.e(dma(vr, sr, so, imm, st))
            p.e(post)
        p.e(ring.m0_adv())


def gemm_issue_b(p, cfg):
    vB, sB, S_B = cfg['vB'], cfg['sB'], cfg['S_B']
    for ks in range(cfg['U'] - 1):
        for qg in range(4):
            p.e(f'buffer_load_dwordx4 {a(aB + ks * 16 + qg * 4, 4)}, v{vB + qg}, s[{S_B}:{S_B + 3}], s{sB} offen{cfg.get("scb", sc)()}')
        p.e(f's_add_u32 s{sB}, s{sB}, 1024')


def gemm_issue_all(p, cfg):
    ring = cfg['ring']
    vB, sB, S_B = cfg['vB'], cfg['sB'], cfg['S_B']

    def stage(st):
        for m0i, pieces, post in cfg['dma_groups']:
            p.e(m0i)
            p.e('s_nop 0')
            for (vr, sr, so, imm) in pieces:
                p.e(dma(vr, sr, so, imm, st))
            p.e(post)
        p.e(ring.m0_adv())

    def bl(ks):
        for qg in range(4):
            p.e(f'buffer_load_dwordx4 {a(aB + (ks % 4) * 16 + qg * 4, 4)}, v{vB + qg}, s[{S_B}:{S_B + 3}], s{sB} offen{cfg.get("scb", sc)()}')
        p.e(f's_add_u32 s{sB}, s{sB}, 1024')
    bl(0)
    stage(0)
    bl(1)
    bl(2)
    for st in range(1, ring.ns - 2):
        stage(st)


def gemm_enter(p, cfg):
    p.e(wait_site(need=need_stage(0)))
    p.e('s_barrier')
    for n in range(4):
        for u in range(2):
            p.e(cfg['a_read'](n, u))
    p.e(wait_site(lgkm=True))


vLane = vLANE


class PhaseD:
    S_W, S_B, S_O = 4, 8, 12
    sOff, sM0, sDcnt, sDelta, sRcnt, sCnt, sB, sSp, sNt, sRb, sBend, sT0, sT1, sWrap, sStep, sBsz = range(28, 44)
    vD, vR, vB, vX = 232, 198, 204, 218
    SLOT, NS = 20480, 6

    def __init__(self, Pn):
        self.Pn = Pn
        self.ring = Ring(self.SLOT, self.NS, self.sM0, self.sDcnt, self.sDelta, self.sRcnt, self.sT0, self.sWrap, self.sStep)
        vD, S_W, sOff, sM0 = self.vD, self.S_W, self.sOff, self.sM0
        self.cfg = dict(nA=10, U=4, RA=8, ring=self.ring, acc=self.acc, a_read=self.a_read, vB=self.vB, sB=self.sB, S_B=self.S_B,
                        addr_adv=self.addr_adv, sCnt=self.sCnt, tail=14, sBend=self.sBend, sBsz=self.sBsz, scb=sc_o_load,
                        dma_groups=[(f's_mov_b32 m0, s{sM0}', [(vD + k, S_W, sOff, 1024 * k) for k in range(4)], []),
                                    (f's_add_u32 m0, s{sM0}, 4096', [(vD + 4, S_W, sOff, 0)],
                                     [f's_add_u32 s{sOff}, s{sOff}, {64 * 1280}'])])

    @staticmethod
    def acc(an, qg):
        return ((qg * 5 + (an >> 1)) * 2 + (an & 1)) * 4

    def a_read(self, n, u):
        kk, an = divmod(n % 80, 10)
        off = (kk & 1) * 10240 + 5120 * u + 64 * (an >> 1)
        return I(f'ds_read_b64_tr_b16 {a(aA + (n % 8) * 4 + 2 * u, 2)}, v{self.vR + (an & 1)} offset:{off}')

    def addr_adv(self, b, G):
        res = []
        for par in range(2):
            last_n = 10 + (8 + par)
            res.append((self.vR + par, b + 4 * last_n - LEAD + 2, b + 2 * G + 4 * par - LEAD))
        return res

    def ids(self, p):
        p.e(f's_and_b32 s{self.sSp}, s2, 7')
        p.e(f's_bfe_u32 s{self.sNt}, s2, 0x20003')
        p.e(f's_lshr_b32 s{self.sRb}, s2, 5')

    def setup(self, p):
        vD, vB, vX, vR = self.vD, self.vB, self.vX, self.vR
        sT0, sT1, sSp, sNt, sRb, sOff, sB = self.sT0, self.sT1, self.sSp, self.sNt, self.sRb, self.sOff, self.sB
        self.ids(p)
        for qg in range(4):
            p.e(f'v_lshlrev_b32 v{vB + qg}, 4, v{vLane}')
            if qg:
                p.e(f'v_add_u32 v{vB + qg}, {qg * 196608}, v{vB + qg}')
        srd(p, self.S_W, PTR['wo'], SZ_WO)
        p.e(f's_add_u32 s{sT0}, s{sSp}, 1')
        p.e(f's_mul_i32 s{self.S_W + 2}, s{sT0}, {768 * 1280}')
        srd(p, self.S_B, PTR['ws'], SZ_O, WS_O)
        srd(p, self.S_O, PTR['ws'], SZ_ACT * 8, WS_PART)
        self.ring.init(p)
        p.e(f's_mul_i32 s{sOff}, s{sSp}, {768 * 1280}')
        p.e(f's_mul_i32 s{sT1}, s{sNt}, 320')
        p.e(f's_add_u32 s{sOff}, s{sOff}, s{sT1}')
        p.e(f's_mul_i32 s{self.sM0}, s{sW}, 5120')
        p.e(f's_lshl_b32 s{sT0}, s{sRb}, 4')
        p.e(f's_lshl_b32 s{sT1}, s{sW}, 2')
        p.e(f's_add_u32 s{sT0}, s{sT0}, s{sT1}')
        p.e(f's_mul_i32 s{sB}, s{sT0}, 192')
        p.e(f's_mul_i32 s{sT1}, s{sSp}, 24')
        p.e(f's_add_u32 s{sB}, s{sB}, s{sT1}')
        p.e(f's_lshl_b32 s{sB}, s{sB}, 10')
        p.e(f's_add_u32 s{self.sBend}, s{sB}, {24 * 1024}')
        p.e(f's_mov_b32 s{self.sBsz}, {SZ_O}')
        vi, vg = vX, vX + 1
        lane_parts(p, vLane, vi, vg)
        sigma_base(p, vX + 2, vi, vg, 320, vX + 3)
        p.e(f'v_and_b32 v{vX + 3}, 1, v{vg}')
        for par in range(2):
            p.e(f'v_xor_b32 v{vX + 4}, {par}, v{vX + 3}')
            p.e(f'v_lshl_add_u32 v{vR + par}, v{vX + 4}, 5, v{vX + 2}')

    def dma_addr(self, p):
        p.e(f's_mul_i32 s{sE0}, s{sW}, 320')
        for pc in range(5):
            piece_voff(p, self.vD + pc, vLane, sE0, 64 * pc, 20, 1280, 'b2', 1024 * pc if pc < 4 else 0, 246)

    def early(self, p):
        S_W, vD = self.S_W, self.vD
        srd(p, S_W, PTR['wo'], SZ_WO)
        p.e(f's_and_b32 s{sE0}, s2, 7')
        p.e(f's_mul_i32 s{sE1}, s{sE0}, {768 * 1280}')
        p.e(f's_add_u32 s{S_W + 2}, s{sE1}, {768 * 1280}')
        p.e(f's_bfe_u32 s{sE0}, s2, 0x20003')
        p.e(f's_mul_i32 s{sE0}, s{sE0}, 320')
        p.e(f's_add_u32 s{sE1}, s{sE1}, s{sE0}')
        p.e(f's_mul_i32 s{sE0}, s{sW}, 5120')
        units = []
        for st in range(self.NS - 2):
            for k in range(4):
                u = []
                if k == 0:
                    if st:
                        u.append(f's_add_u32 s{sE1}, s{sE1}, {64 * 1280}')
                    u += [f's_add_u32 m0, s{sE0}, {st * self.SLOT}', 's_nop 0']
                u.append(dma(vD + k, S_W, sE1, 1024 * k, st))
                units.append(u)
            units.append([f's_add_u32 m0, s{sE0}, {st * self.SLOT + 4096}', 's_nop 0', dma(vD + 4, S_W, sE1, 0, st)])
        return Feed(units)

    def issue_w(self, p, issue=True):
        gemm_issue_weights(p, self.cfg, issue)

    def zero(self, p):
        zero_v(p, 0, 160)

    def issue_b(self, p):
        gemm_issue_b(p, self.cfg)

    def main(self, p):
        gemm_enter(p, self.cfg)
        p.e(f's_mov_b32 s{self.sCnt}, 6')
        p.loop([gemm_body(it, self.Pn, self.cfg) for it in range(6)])

    def epilogue(self, p, feed=None):
        feed = feed or Feed()
        vX, sT0, sT1, S_O = self.vX, self.sT0, self.sT1, self.S_O
        p.e('s_nop 7')
        p.e(f'v_lshlrev_b32 v{vX}, 4, v{vLane}')
        p.e(f's_lshl_b32 s{sT0}, s{self.sSp}, 7')
        p.e(f's_lshl_b32 s{sT1}, s{self.sRb}, 4')
        p.e(f's_add_u32 s{sT0}, s{sT0}, s{sT1}')
        p.e(f's_lshl_b32 s{sT1}, s{sW}, 2')
        p.e(f's_add_u32 s{sT0}, s{sT0}, s{sT1}')
        p.e(f's_mul_i32 s{sT0}, s{sT0}, 20')
        p.e(f's_mul_i32 s{sT1}, s{self.sNt}, 5')
        p.e(f's_add_u32 s{sT0}, s{sT0}, s{sT1}')
        p.e(f's_lshl_b32 s{sT0}, s{sT0}, 10')
        k = 0
        for qg in range(4):
            for pp in range(5):
                c = self.acc(2 * pp, qg)
                d = 160 + (k % 4) * 4
                k += 1
                for r in range(4):
                    p.e(f'v_cvt_pk_bf16_f32 v{d + r}, v{c + 2 * r}, v{c + 2 * r + 1}')
                if pp == 4:
                    p.e(f's_add_u32 s{sT0}, s{sT0}, 4096')
                off = (pp % 4) * 1024
                p.e(f'buffer_store_dwordx4 {v(d, 4)}, v{vX}, s[{S_O}:{S_O + 3}], s{sT0} offen' + (f' offset:{off}' if off else '') + sc())
                feed.emit(p, 2 if k <= 4 else 1)
            p.e(f's_add_u32 s{sT0}, s{sT0}, {20 * 1024 - 4096}')
        feed.flush(p)


class PhaseF:
    S_W, S_B, S_O = 4, 12, 16
    sOff, sM0, sDcnt, sDelta, sRcnt, sCnt, sB, sFb, sRb, sBend, sT0, sT1, sWrap, sStep = range(28, 42)
    sBsz = 88
    vD, vR, vB, vX = 237, 198, 204, 218
    SLOT, NS = 24576, 6
    U, RA = 4, 12

    def __init__(self, Pn):
        self.Pn = Pn
        self.ring = Ring(self.SLOT, self.NS, self.sM0, self.sDcnt, self.sDelta, self.sRcnt, self.sT0, self.sWrap, self.sStep)

    @staticmethod
    def acc(an, qg):
        return (an * 2 + qg) * 4

    def a_read(self, n):
        kk, an = divmod(n % (12 * self.U), 12)
        return I(f'ds_read_b128 {a(aA + an * 4, 4)}, v{self.vR} offset:{(kk & 1) * 12288 + an * 1024}')

    def groups(self, sM0, sOff):
        vD, S_W = self.vD, self.S_W
        return [(f's_mov_b32 m0, s{sM0}', [(vD, S_W, sOff, 1024 * k) for k in range(4)]),
                (f's_add_u32 m0, s{sM0}, 4096', [(vD + 1, S_W, sOff, 1024 * k) for k in range(2)])]

    def ids(self, p):
        sT0, sT1 = self.sT0, self.sT1
        p.e(f's_and_b32 s{sT0}, s2, 3')
        p.e(f's_lshl_b32 s{sT0}, s{sT0}, 2')
        p.e(f's_bfe_u32 s{sT1}, s2, 0x20003')
        p.e(f's_add_u32 s{self.sFb}, s{sT0}, s{sT1}')
        p.e(f's_bfe_u32 s{sT0}, s2, 0x10002')
        p.e(f's_lshl_b32 s{sT0}, s{sT0}, 3')
        p.e(f's_lshr_b32 s{sT1}, s2, 5')
        p.e(f's_add_u32 s{self.sRb}, s{sT0}, s{sT1}')

    def dma_addr(self, p):
        p.e(f'v_lshlrev_b32 v{self.vD}, 4, v{vLane}')
        p.e(f'v_add_u32 v{self.vD + 1}, 4096, v{self.vD}')

    def early(self, p):
        srd(p, self.S_W, PTR['ws'], SZ_WF, WS_WF)
        p.e(f's_and_b32 s{sE0}, s2, 3')
        p.e(f's_lshl_b32 s{sE0}, s{sE0}, 2')
        p.e(f's_bfe_u32 s{sE1}, s2, 0x20003')
        p.e(f's_add_u32 s{sE0}, s{sE0}, s{sE1}')
        p.e(f's_mul_i32 s{sE1}, s{sE0}, {20 * 12288}')
        p.e(f's_mul_i32 s{sE0}, s{sW}, 6144')
        p.e(f's_add_u32 s{sE1}, s{sE1}, s{sE0}')
        units = []
        for st in range(self.NS - 2):
            for k in range(6):
                u = []
                if k == 0:
                    if st:
                        u.append(f's_add_u32 s{sE1}, s{sE1}, {self.SLOT}')
                    u += [f's_add_u32 m0, s{sE0}, {st * self.SLOT}', 's_nop 0']
                if k == 4:
                    u += [f's_add_u32 m0, s{sE0}, {st * self.SLOT + 4096}', 's_nop 0']
                u.append(dma(self.vD + (k >= 4), self.S_W, sE1, 1024 * (k % 4), st))
                units.append(u)
        return Feed(units)

    def setup(self, p):
        vB, vR = self.vB, self.vR
        sT0, sT1 = self.sT0, self.sT1
        self.ids(p)
        for qg in range(2):
            p.e(f'v_lshlrev_b32 v{vB + qg}, 4, v{vLane}')
            if qg:
                p.e(f'v_add_u32 v{vB + qg}, 20480, v{vB + qg}')
        p.e(f'v_lshlrev_b32 v{vR}, 4, v{vLane}')
        srd(p, self.S_W, PTR['ws'], SZ_WF, WS_WF)
        p.e(f's_add_u32 s{sT0}, s{self.sFb}, 1')
        p.e(f's_mul_i32 s{self.S_W + 2}, s{sT0}, {20 * 12288}')
        srd(p, self.S_B, PTR['ws'], SZ_ACT, WS_H2)
        srd(p, self.S_O, PTR['ws'], SZ_HH, WS_HH)
        self.ring.init(p)
        p.e(f's_mov_b32 s{self.sDcnt}, 4')
        p.e(f's_mul_i32 s{self.sM0}, s{sW}, 6144')
        p.e(f's_mul_i32 s{self.sOff}, s{self.sFb}, {20 * 12288}')
        p.e(f's_add_u32 s{self.sOff}, s{self.sOff}, s{self.sM0}')
        p.e(f's_add_u32 s{self.sOff}, s{self.sOff}, {4 * self.SLOT}')
        p.e(f's_add_u32 s{self.sM0}, s{self.sM0}, {4 * self.SLOT}')
        p.e(f's_lshl_b32 s{sT0}, s{self.sRb}, 3')
        p.e(f's_lshl_b32 s{sT1}, s{sW}, 1')
        p.e(f's_add_u32 s{sT0}, s{sT0}, s{sT1}')
        p.e(f's_mul_i32 s{self.sB}, s{sT0}, 20480')
        p.e(f's_add_u32 s{self.sBend}, s{self.sB}, 20480')
        p.e(f's_mov_b32 s{self.sBsz}, {SZ_ACT}')

    def zero(self, p):
        zero_v(p, 0, 96)

    def bload(self, kk, qg):
        return I(f'buffer_load_dwordx4 {a(aB + (kk % self.U) * 8 + qg * 4, 4)}, v{self.vB + qg}, s[{self.S_B}:{self.S_B + 3}], s{self.sB} offen{sc()}')

    def issue_b(self, p):
        for ks in range(self.U - 1):
            for qg in range(2):
                p.e(self.bload(ks, qg))
            p.e(f's_add_u32 s{self.sB}, s{self.sB}, 1024')

    def body(self, it):
        U, ring = self.U, self.ring
        G = 24
        mf = []
        for kk in range(U):
            for an in range(12):
                for qg in range(2):
                    c = self.acc(an, qg)
                    mf.append(I(f'v_mfma_f32_16x16x32_bf16 {v(c, 4)}, {a(aA + an * 4, 4)}, {a(aB + kk * 8 + qg * 4, 4)}, {v(c, 4)}'))
        seg = Seg(mf)
        LD = 16
        for n in range(12 * U):
            seg.put(2 * n - LD, 'ds', self.a_read(n))
        for m in range(6 * U):
            seg.put(4 * m - 2, 'pre', wait_site(lgkm=True, vm=(m % 6 == 0)))
        sq = ScalarQueue(seg)
        advs = []
        for h in range(U // 2):
            b = 2 * G * h
            st = (U // 2) * it + h
            for kh in range(2):
                kk = 2 * h + kh
                for qg in range(2):
                    seg.put(b + kh * G + 1 + 2 * qg, 'vm', self.bload(kk + U - 1, qg))
                sq.add(b + kh * G + 4, b + kh * G + G, [f's_add_u32 s{self.sB}, s{self.sB}, 1024', f's_cmp_lt_u32 s{self.sB}, s{self.sBend}',
                                                       f's_cselect_b32 s{self.S_B + 2}, s{self.sBsz}, 0'])
            target = st + ring.ns - 2
            gs = [b + 7, b + 11, b + 15, b + 19, b + 31, b + 35]
            grp = self.groups(self.sM0, self.sOff)
            sq.add(b + 3, gs[0], [grp[0][0]])
            for (vr, sr, so, imm), g in zip(grp[0][1], gs[:4]):
                seg.put(g, 'vm', dma(vr, sr, so, imm, target))
            sq.add(gs[3] + 1, gs[4], [grp[1][0]])
            for (vr, sr, so, imm), g in zip(grp[1][1], gs[4:]):
                seg.put(g, 'vm', dma(vr, sr, so, imm, target))
            sq.add(gs[5] + 1, b + 2 * G + 2, [f's_add_u32 s{self.sOff}, s{self.sOff}, {self.SLOT}'])
            first_next = b + 2 * G - LD
            seg.put(first_next - 8, 'pre', wait_site(need=need_stage(st + 1)))
            seg.put(first_next - 4, 'pre', 's_barrier')
            sq.add(b + 9, first_next - 8, ring.read_adv())
            advs.append(first_next)
            if h < U // 2 - 1:
                sq.add(gs[5] + 2, b + 2 * G + 3, ring.m0_adv())
            else:
                tail = ring.m0_adv()
        sq.place()
        for fn in advs:
            seg.put(fn - 2, 'valu', f'v_add_u32 v{self.vR}, s{ring.sDelta}, v{self.vR}')
        out = [I(f'{self.Pn}_loop:')]
        out += seg.emit()
        out += [I(c) for c in tail]
        out.append(I(f's_sub_u32 s{self.sCnt}, s{self.sCnt}, 1'))
        out.append(I(f's_cmp_lg_u32 s{self.sCnt}, 0'))
        out.append(I(f's_cbranch_scc1 {self.Pn}_loop'))
        return out

    def main(self, p):
        p.e(wait_site(need=need_stage(0)))
        p.e('s_barrier')
        for n in range(8):
            p.e(self.a_read(n))
        p.e(wait_site(lgkm=True))
        p.e(f's_mov_b32 s{self.sCnt}, 5')
        p.loop([self.body(it) for it in range(5)])

    def epilogue(self, p, feed=None):
        feed = feed or Feed()
        acc, vX, vB, S_O = self.acc, self.vX, self.vB, self.S_O
        sT0, sT1, sOff, sB = self.sT0, self.sT1, self.sOff, self.sB
        p.e('s_nop 7')
        p.e(f'v_lshlrev_b32 v{vX}, 4, v{vLane}')
        p.e(f'v_add_u32 v{vX + 1}, 49152, v{vX}')
        p.e(f's_lshl_b32 s{sT0}, s{self.sRb}, 3')
        p.e(f's_lshl_b32 s{sT1}, s{sW}, 1')
        p.e(f's_add_u32 s{sT0}, s{sT0}, s{sT1}')
        p.e(f's_mul_i32 s{sOff}, s{sT0}, 48')
        p.e(f's_mul_i32 s{sT1}, s{self.sFb}, 3')
        p.e(f's_add_u32 s{sOff}, s{sOff}, s{sT1}')
        p.e(f's_lshl_b32 s{sOff}, s{sOff}, 10')
        p.e(f's_mov_b32 s{sB}, {fbits(-LOG2E):#x}')
        k = 0
        for qg in range(2):
            for pp in range(3):
                t = 100 + (k % 2) * 12
                k += 1
                for h in range(2):
                    g0, u0 = acc(2 * (2 * pp + h), qg), acc(2 * (2 * pp + h) + 1, qg)
                    tt = t + 4 * h
                    for r in range(4):
                        p.e(f'v_mul_f32 v{tt + r}, s{sB}, v{g0 + r}')
                    for r in range(4):
                        p.e(f'v_exp_f32 v{tt + r}, v{tt + r}')
                    for r in range(4):
                        p.e(f'v_mul_f32 v{u0 + r}, v{g0 + r}, v{u0 + r}')
                    for r in range(4):
                        p.e(f'v_add_f32 v{tt + r}, 1.0, v{tt + r}')
                    for r in range(4):
                        p.e(f'v_rcp_f32 v{tt + r}, v{tt + r}')
                    p.e('s_nop 0')
                    for r in range(4):
                        p.e(f'v_mul_f32 v{tt + r}, v{tt + r}, v{u0 + r}')
                for r in range(4):
                    p.e(f'v_cvt_pk_bf16_f32 v{t + 8 + r}, v{t + 2 * r}, v{t + 2 * r + 1}')
                off = f' offset:{pp * 1024}' if pp else ''
                p.e(f'buffer_store_dwordx4 {v(t + 8, 4)}, v{vX + qg}, s[{S_O}:{S_O + 3}], s{sOff} offen{off}{sc()}')
                feed.emit(p, 2)
        feed.flush(p)


class PhaseG:
    S_W, S_B, S_X, S_M, S_O = 4, 8, 12, 16, 20
    sOff, sM0, sB, sNt, sRb, sT0, sT1 = range(28, 35)
    vD, vB, vX = 240, 204, 218
    KS, R = 12, 4
    aAr, aBr = 0, 96
    NEARLY = 2

    def __init__(self, Pn):
        self.Pn = Pn

    @staticmethod
    def acc(an, qg):
        return (qg * 5 + an) * 4

    def aload(self, kk, an, soff):
        off = f' offset:{an * 1024}' if 0 < an < 4 else ''
        return I(f'buffer_load_dwordx4 {a(self.aAr + (kk % self.R) * 20 + an * 4, 4)}, v{self.vD + (an == 4)}, s[{self.S_W}:{self.S_W + 3}], s{soff} offen{off}')

    def bload(self, kk, qg):
        return I(f'buffer_load_dwordx4 {a(self.aBr + (kk % self.R) * 16 + qg * 4, 4)}, v{self.vB + qg}, s[{self.S_B}:{self.S_B + 3}], s{self.sB} offen{sc()}')

    def ids(self, p):
        sT0, sT1 = self.sT0, self.sT1
        p.e(f's_and_b32 s{sT0}, s2, 1')
        p.e(f's_lshl_b32 s{sT0}, s{sT0}, 2')
        p.e(f's_bfe_u32 s{sT1}, s2, 0x20003')
        p.e(f's_add_u32 s{self.sNt}, s{sT0}, s{sT1}')
        p.e(f's_bfe_u32 s{sT0}, s2, 0x20001')
        p.e(f's_lshl_b32 s{sT0}, s{sT0}, 3')
        p.e(f's_lshr_b32 s{sT1}, s2, 5')
        p.e(f's_add_u32 s{self.sRb}, s{sT0}, s{sT1}')

    def dma_addr(self, p):
        p.e(f'v_lshlrev_b32 v{self.vD}, 4, v{vLane}')
        p.e(f'v_add_u32 v{self.vD + 1}, 4096, v{self.vD}')

    def w_offset(self, p, dst, tmp):
        p.e(f's_and_b32 s{dst}, s2, 1')
        p.e(f's_lshl_b32 s{dst}, s{dst}, 2')
        p.e(f's_bfe_u32 s{tmp}, s2, 0x20003')
        p.e(f's_add_u32 s{dst}, s{dst}, s{tmp}')
        p.e(f's_mul_i32 s{dst}, s{dst}, 48')
        p.e(f's_mul_i32 s{tmp}, s{sW}, 12')
        p.e(f's_add_u32 s{dst}, s{dst}, s{tmp}')
        p.e(f's_mul_i32 s{dst}, s{dst}, 5120')

    def early(self, p):
        srd(p, self.S_W, PTR['ws'], SZ_WG, WS_WG)
        self.w_offset(p, sE1, sE0)
        units = []
        for kk in range(self.NEARLY):
            for an in range(5):
                u = []
                if an == 0 and kk:
                    u.append(f's_add_u32 s{sE1}, s{sE1}, 5120')
                u.append(self.aload(kk, an, sE1))
                units.append(u)
        return Feed(units)

    def setup(self, p):
        vB = self.vB
        sT1, sOff, sB = self.sT1, self.sOff, self.sB
        self.ids(p)
        for qg in range(4):
            p.e(f'v_lshlrev_b32 v{vB + qg}, 4, v{vLane}')
            if qg:
                p.e(f'v_add_u32 v{vB + qg}, {qg * 49152}, v{vB + qg}')
        srd(p, self.S_W, PTR['ws'], SZ_WG, WS_WG)
        srd(p, self.S_B, PTR['ws'], SZ_HH, WS_HH)
        srd(p, self.S_X, PTR['ws'], SZ_ACT, WS_X1)
        srd(p, self.S_M, PTR['ws'], 15360, WS_MOD)
        srd(p, self.S_O, PTR['out'], SZ_X)
        self.w_offset(p, sOff, sT1)
        p.e(f's_add_u32 s{sOff}, s{sOff}, {self.NEARLY * 5120}')
        p.e(f's_mul_i32 s{sB}, s{self.sRb}, {4 * 48}')
        p.e(f's_mul_i32 s{sT1}, s{sW}, 12')
        p.e(f's_add_u32 s{sB}, s{sB}, s{sT1}')
        p.e(f's_lshl_b32 s{sB}, s{sB}, 10')

    def zero(self, p):
        zero_v(p, 0, 80)

    def issue_late(self, p):
        for kk in range(self.R - 1):
            for qg in range(4):
                p.e(self.bload(kk, qg))
            p.e(f's_add_u32 s{self.sB}, s{self.sB}, 1024')
            if kk >= self.NEARLY:
                for an in range(5):
                    p.e(self.aload(kk, an, self.sOff))
                p.e(f's_add_u32 s{self.sOff}, s{self.sOff}, 5120')

    def main(self, p):
        KS, R, acc, sB, sOff = self.KS, self.R, self.acc, self.sB, self.sOff
        p.e(wait_site(vm=True))
        mf = []
        for kk in range(KS):
            for an in range(5):
                for qg in range(4):
                    c = acc(an, qg)
                    mf.append(I(f'v_mfma_f32_16x16x32_bf16 {v(c, 4)}, {a(self.aAr + (kk % R) * 20 + an * 4, 4)}, {a(self.aBr + (kk % R) * 16 + qg * 4, 4)}, {v(c, 4)}'))
        seg = Seg(mf)
        for kk in range(KS):
            b = 20 * kk
            if kk:
                seg.put(b - 1, 'pre', wait_site(vm=True))
            if kk + R - 1 < KS:
                k2 = kk + R - 1
                for qg in range(4):
                    seg.put(b + 2 * qg, 'vm', self.bload(k2, qg))
                for an in range(5):
                    seg.put(b + 8 + 2 * an, 'vm', self.aload(k2, an, sOff))
                seg.put(b + 7, 'pre', f's_add_u32 s{sB}, s{sB}, 1024')
                seg.put(b + 17, 'pre', f's_add_u32 s{sOff}, s{sOff}, 5120')
        p.e(seg.emit())

    def epilogue(self, p):
        vX, acc = self.vX, self.acc
        sT0, sT1, sB, sOff, sRb, sNt = self.sT0, self.sT1, self.sB, self.sOff, self.sRb, self.sNt
        S_X, S_M, S_O = self.S_X, self.S_M, self.S_O
        p.e(f'v_lshlrev_b32 v{vX}, 4, v{vLane}')
        p.e(f's_lshl_b32 s{sT0}, s{sRb}, 2')
        p.e(f's_add_u32 s{sT0}, s{sT0}, s{sW}')
        p.e(f's_mul_i32 s{sB}, s{sT0}, 20480')
        XR, GB = 100, 112
        for an in range(5):
            p.e(f's_mul_i32 s{sT1}, s{sNt}, 5')
            p.e(f's_add_u32 s{sT1}, s{sT1}, {an}')
            p.e(f's_and_b32 s{sOff}, s{sT1}, 1')
            p.e(f's_lshl_b32 s{sOff}, s{sOff}, 3')
            p.e(f's_lshr_b32 s{sT1}, s{sT1}, 1')
            p.e(f's_lshl_b32 s{sT1}, s{sT1}, 10')
            p.e(f's_add_u32 s{sT1}, s{sT1}, s{sOff}')
            p.e(f's_add_u32 s{sT1}, s{sT1}, s{sB}')
            p.e(f'buffer_load_dwordx2 {v(XR + 2 * an, 2)}, v{vX}, s[{S_X}:{S_X + 3}], s{sT1} offen{sc()}')
        p.e(f'v_lshrrev_b32 v{vX + 1}, 4, v{vLane}')
        p.e(f'v_lshlrev_b32 v{vX + 2}, 4, v{vX + 1}')
        p.e(f's_mul_i32 s{sT1}, s{sNt}, 320')
        p.e(f's_add_u32 s{sT1}, s{sT1}, {5 * 2560}')
        for an in range(5):
            p.e(f'buffer_load_dwordx4 {v(GB + 4 * an, 4)}, v{vX + 2}, s[{S_M}:{S_M + 3}], s{sT1} offen offset:{64 * an}')
        p.e('s_nop 4')
        p.e('s_waitcnt lgkmcnt(0)')
        p.e('s_barrier')
        p.e(f's_mul_i32 s{sT0}, s{sW}, 5120')
        p.e(f'v_add_u32 v{vX + 3}, s{sT0}, v{vX}')
        p.e(f'v_add_u32 v{vX + 5}, 40960, v{vX + 3}')
        for qg in range(4):
            for an in range(5):
                p.e(f'ds_write_b128 v{vX + 3 + 2 * (qg >> 1)}, {v(acc(an, qg), 4)} offset:{(qg & 1) * 20480 + an * 1024}')
        p.e('s_waitcnt lgkmcnt(0)')
        p.e('s_barrier')
        p.e(f's_mul_i32 s{sT0}, s{sW}, 20480')
        p.e(f'v_add_u32 v{vX + 3}, s{sT0}, v{vX}')
        for src in range(4):
            for an in range(5):
                p.e(f'ds_read_b128 {v((src * 5 + an) * 4, 4)}, v{vX + 3} offset:{src * 5120 + an * 1024}')
        p.e('s_waitcnt lgkmcnt(0)')
        for an in range(5):
            for r in range(4):
                p.e(f'v_add_f32 v{an * 4 + r}, v{an * 4 + r}, v{20 + an * 4 + r}')
                p.e(f'v_add_f32 v{40 + an * 4 + r}, v{40 + an * 4 + r}, v{60 + an * 4 + r}')
        for an in range(5):
            for r in range(4):
                p.e(f'v_add_f32 v{an * 4 + r}, v{an * 4 + r}, v{40 + an * 4 + r}')
        p.e('s_waitcnt vmcnt(0)')
        p.e(f'v_and_b32 v{vX + 4}, 15, v{vLane}')
        p.e(f's_movk_i32 s{sT0}, 1280')
        p.e(f'v_mul_lo_u32 v{vX + 4}, v{vX + 4}, s{sT0}')
        p.e(f'v_lshl_add_u32 v{vX + 4}, v{vX + 1}, 3, v{vX + 4}')
        p.e(f's_lshl_b32 s{sT0}, s{sRb}, 2')
        p.e(f's_add_u32 s{sT0}, s{sT0}, s{sW}')
        p.e(f's_mul_i32 s{sT0}, s{sT0}, 20480')
        p.e(f's_mul_i32 s{sT1}, s{sNt}, 160')
        p.e(f's_add_u32 s{sT0}, s{sT0}, s{sT1}')
        for an in range(5):
            t = 40 + an * 8
            p.e(f'v_lshlrev_b32 v{t}, 16, v{XR + 2 * an}')
            p.e(f'v_and_b32 v{t + 1}, 0xffff0000, v{XR + 2 * an}')
            p.e(f'v_lshlrev_b32 v{t + 2}, 16, v{XR + 2 * an + 1}')
            p.e(f'v_and_b32 v{t + 3}, 0xffff0000, v{XR + 2 * an + 1}')
            for r in range(4):
                p.e(f'v_fma_f32 v{t + r}, v{an * 4 + r}, v{GB + 4 * an + r}, v{t + r}')
            p.e(f'v_cvt_pk_bf16_f32 v{t + 4}, v{t}, v{t + 1}')
            p.e(f'v_cvt_pk_bf16_f32 v{t + 5}, v{t + 2}, v{t + 3}')
            p.e(f'buffer_store_dwordx2 {v(t + 4, 2)}, v{vX + 4}, s[{S_O}:{S_O + 3}], s{sT0} offen offset:{32 * an}')
```

```python
from common import *
import struct

LOG2E = 1.4426950408889634
CS = (192 ** -0.5) * LOG2E


def fbits(x):
    return struct.unpack('<I', struct.pack('<f', x))[0]


def round_bf16(p, reg, tmp=None):
    p.e(f'v_cvt_pk_bf16_f32 v{reg}, v{reg}, v{reg}')
    p.e(f'v_and_b32 v{reg}, 0xffff0000, v{reg}')


def gen_a(name='pha_kernel', nwg=120):
    p = Prog()
    p.e(kernel_head(name))
    rt_begin(p)
    p.e(f's_cmp_ge_u32 s2, 240')
    p.e(f's_cbranch_scc1 {name}_end')
    p.e(f's_cmp_ge_u32 s2, {nwg}')
    p.e(f's_cbranch_scc1 {name}_relay')
    p.e(f's_load_dwordx2 s[4:5], s[0:1], {KA["c"]}')
    p.e(f's_load_dwordx2 s[6:7], s[0:1], {KA["wmod"]}')
    p.e(f's_load_dwordx2 s[8:9], s[0:1], {KA["ws"]}')
    p.e(f's_mov_b32 s{sW}, 0')
    p.e('v_and_b32 v1, 3, v0')
    p.e('v_lshrrev_b32 v2, 2, v0')
    p.e('s_movk_i32 s10, 7680')
    p.e('v_mul_lo_u32 v3, v2, s10')
    p.e('v_lshl_add_u32 v3, v1, 4, v3')
    p.e('v_lshlrev_b32 v4, 1, v2')
    p.e('s_lshl_b32 s11, s2, 6')
    p.e('s_waitcnt lgkmcnt(0)')
    srd(p, 12, 4, 1280)
    srd(p, 16, 6, SZ_WMOD)
    srd(p, 20, 8, 15360, WS_MOD)
    p.e('s_cmp_ge_u32 s2, 2')
    p.e(f's_cbranch_scc1 {name}_noclr')
    srd(p, 32, 8, FL_N * 128, WS_FLAGS)
    p.e('v_mov_b64 v[64:65], 0')
    p.e('v_mov_b64 v[66:67], 0')
    p.e('v_lshlrev_b32 v68, 4, v0')
    p.e('s_lshl_b32 s36, s2, 12')
    p.e('buffer_store_dwordx4 v[64:67], v68, s[32:35], s36 offen')
    p.e(f'{name}_noclr:')
    for m in range(10):
        p.e(f'buffer_load_ushort v{10 + m}, v4, s[12:15], 0 offen offset:{128 * m}')
    for m in range(10):
        p.e(f'buffer_load_dwordx4 {v(24 + 4 * m, 4)}, v3, s[16:19], s11 offen')
        if m < 9:
            p.e(f's_add_u32 s11, s11, {64 * 7680}')
    for r in range(8):
        p.e(f'v_mov_b32 v{64 + r}, 0')
    p.e(f's_mov_b32 s24, {fbits(-LOG2E):#x}')
    p.e('s_waitcnt vmcnt(10)')
    for m in range(10):
        p.e(f'v_lshlrev_b32 v{10 + m}, 16, v{10 + m}')
    for m in range(10):
        p.e(f'v_mul_f32 v{80 + m}, s24, v{10 + m}')
    for m in range(10):
        p.e(f'v_exp_f32 v{80 + m}, v{80 + m}')
    for m in range(10):
        p.e(f'v_add_f32 v{80 + m}, 1.0, v{80 + m}')
    for m in range(10):
        p.e(f'v_rcp_f32 v{80 + m}, v{80 + m}')
    for m in range(10):
        p.e(f'v_mul_f32 v{10 + m}, v{10 + m}, v{80 + m}')
    for m in range(10):
        round_bf16(p, 10 + m)
    for m in range(10):
        p.e(f's_waitcnt vmcnt({9 - m})')
        for d in range(4):
            p.e(f'v_lshlrev_b32 v90, 16, v{24 + 4 * m + d}')
            p.e(f'v_and_b32 v91, 0xffff0000, v{24 + 4 * m + d}')
            p.e(f'v_fmac_f32 v{64 + 2 * d}, v90, v{10 + m}')
            p.e(f'v_fmac_f32 v{64 + 2 * d + 1}, v91, v{10 + m}')
    for sh in (4, 8):
        for r in range(8):
            p.e(f'v_mov_b32 v{72 + r}, v{64 + r}')
        p.e('s_nop 1')
        for r in range(8):
            p.e(f'v_add_f32_dpp v{64 + r}, v{72 + r}, v{64 + r} row_ror:{sh} row_mask:0xf bank_mask:0xf')
    for sw in ('v_permlane16_swap_b32', 'v_permlane32_swap_b32'):
        for r in range(8):
            p.e(f'v_mov_b32 v{72 + r}, v{64 + r}')
        p.e('s_nop 1')
        for r in range(8):
            p.e(f'{sw} v{72 + r}, v{64 + r}')
        for r in range(8):
            p.e(f'v_add_f32 v{64 + r}, v{72 + r}, v{64 + r}')
    p.e('v_lshrrev_b32 v5, 6, v0')
    p.e('v_lshlrev_b32 v5, 7, v5')
    p.e('v_lshl_add_u32 v5, v1, 5, v5')
    p.e('v_and_b32 v6, 63, v0')
    p.e('v_cmp_gt_u32 vcc, 4, v6')
    p.e('s_and_saveexec_b64 s[26:27], vcc')
    p.e('ds_write_b128 v5, v[64:67]')
    p.e('ds_write_b128 v5, v[68:71] offset:16')
    p.e('s_mov_b64 exec, s[26:27]')
    p.e('s_waitcnt lgkmcnt(0)')
    p.e('s_barrier')
    p.e('v_cmp_gt_u32 vcc, 32, v0')
    p.e('s_and_saveexec_b64 s[26:27], vcc')
    p.e(f's_cbranch_execz {name}_end')
    p.e('v_lshlrev_b32 v5, 2, v0')
    for wv in range(4):
        p.e(f'ds_read_b32 v{64 + wv}, v5 offset:{128 * wv}')
    p.e('s_waitcnt lgkmcnt(0)')
    p.e('v_add_f32 v64, v64, v65')
    p.e('v_add_f32 v66, v66, v67')
    p.e('v_add_f32 v64, v64, v66')
    round_bf16(p, 64)
    p.e('s_lshl_b32 s11, s2, 5')
    p.e('s_mul_hi_u32 s25, s11, 0x666667')
    p.e('s_cmp_eq_u32 s25, 1')
    p.e('s_cselect_b32 s28, 1, 0')
    p.e('s_cmp_eq_u32 s25, 4')
    p.e('s_cselect_b32 s28, 1, s28')
    p.e('s_cmp_eq_u32 s28, 1')
    p.e(f's_cbranch_scc0 {name}_st')
    p.e('v_add_f32 v64, 1.0, v64')
    round_bf16(p, 64)
    p.e(f'{name}_st:')
    p.e('s_lshl_b32 s11, s11, 2')
    p.e('buffer_store_dword v64, v5, s[20:23], s11 offen')
    p.e('s_waitcnt vmcnt(0)')
    rt_end(p, 0)
    p.e('s_endpgm')
    gen_relayout(p, name)
    p.e(f'{name}_end:')
    p.e('s_endpgm')
    p.resolve()
    return p, p.verify()


def gen_relayout(p, name):
    p.e(f'{name}_relay:')
    p.e(f's_load_dwordx2 s[4:5], s[0:1], {KA["w1"]}')
    p.e(f's_load_dwordx2 s[6:7], s[0:1], {KA["w3"]}')
    p.e(f's_load_dwordx2 s[8:9], s[0:1], {KA["w2"]}')
    p.e(f's_load_dwordx2 s[10:11], s[0:1], {KA["ws"]}')
    p.e('v_lshrrev_b32 v1, 6, v0')
    p.e('v_and_b32 v2, 63, v0')
    p.e('v_readfirstlane_b32 s40, v1')
    p.e('v_bfe_u32 v3, v2, 4, 2')
    p.e('v_lshlrev_b32 v3, 1, v3')
    p.e('v_and_b32 v4, 7, v2')
    p.e('v_xor_b32 v3, v3, v4')
    p.e('v_lshlrev_b32 v3, 4, v3')
    p.e('v_lshrrev_b32 v4, 3, v2')
    p.e('v_mul_u32_u24 v5, 3072, v4')
    p.e('v_add_u32 v5, v5, v3')
    p.e('v_mul_u32_u24 v6, 1280, v4')
    p.e('v_add_u32 v6, v6, v3')
    p.e('v_and_b32 v7, 15, v2')
    p.e('v_lshrrev_b32 v8, 4, v2')
    p.e('v_lshrrev_b32 v9, 2, v7')
    p.e('v_lshl_add_u32 v9, v8, 2, v9')
    p.e('v_lshlrev_b32 v9, 7, v9')
    p.e('v_bfe_u32 v10, v7, 1, 1')
    p.e('v_lshl_add_u32 v9, v10, 4, v9')
    p.e('v_and_b32 v10, 1, v7')
    p.e('v_lshl_add_u32 v9, v10, 3, v9')
    p.e('s_mul_i32 s41, s40, 12288')
    p.e('v_add_u32 v9, s41, v9')
    p.e('v_and_b32 v10, 1, v8')
    p.e('v_lshlrev_b32 v10, 1, v10')
    p.e('v_lshrrev_b32 v11, 3, v7')
    p.e('v_or_b32 v10, v10, v11')
    for t in range(4):
        p.e(f'v_xor_b32 v11, {t}, v10')
        p.e(f'v_lshl_add_u32 v{12 + t}, v11, 5, v9')
    p.e('v_lshlrev_b32 v16, 4, v2')
    p.e('s_sub_u32 s42, s2, 120')
    p.e('s_lshl_b32 s42, s42, 2')
    p.e('s_add_u32 s42, s42, s40')
    p.e('s_mul_hi_u32 s43, s42, 0xaaaaaab')
    p.e('s_mul_i32 s44, s43, 24')
    p.e('s_sub_u32 s44, s42, s44')
    p.e('s_mul_hi_u32 s45, s42, 0x1999999a')
    p.e('s_mul_i32 s46, s45, 10')
    p.e('s_sub_u32 s46, s42, s46')
    p.e('s_waitcnt lgkmcnt(0)')
    srd(p, 12, 4, SZ_W1)
    srd(p, 16, 6, SZ_W1)
    srd(p, 20, 8, SZ_W1)
    srd(p, 24, 10, SZ_WF, WS_WF)
    srd(p, 28, 10, SZ_WG, WS_WG)
    p.e(f's_mul_i32 s47, s43, {32 * 3072}')
    p.e('s_lshl_b32 s48, s44, 7')
    p.e('s_add_u32 s47, s47, s48')
    p.e(f's_mul_i32 s49, s45, {32 * 1280}')
    p.e('s_lshl_b32 s48, s46, 7')
    p.e('s_add_u32 s49, s49, s48')
    for m, (sr, vo, so, pitch) in enumerate(((12, 5, 47, 3072), (16, 5, 47, 3072), (20, 6, 49, 1280))):
        for pc in range(4):
            p.e(f's_add_u32 m0, s41, {m * 4096 + pc * 1024}')
            p.e(f's_add_u32 s50, s{so}, {pc * 8 * pitch}')
            p.e(I(f'buffer_load_dwordx4 v{vo}, s[{sr}:{sr + 3}], s50 offen lds', tag=('dma', m)))
    for m in range(3):
        p.e(wait_site(need=lambda op, m=m: op.tag is not None and op.tag[0] == 'dma' and op.tag[1] <= m))
        for t in range(4):
            for u in range(2):
                r = 20 + (m * 4 + t) * 4 + 2 * u
                p.e(f'ds_read_b64_tr_b16 v[{r}:{r + 1}], v{12 + t} offset:{m * 4096 + 2048 * u}')
    for m in range(3):
        for t in range(4):
            if m < 2:
                p.e('s_lshl_b32 s50, s44, 2')
                p.e(f's_add_u32 s50, s50, {t}')
                p.e('s_mul_hi_u32 s51, s50, 0x2aaaaaab')
                p.e('s_mul_i32 s52, s51, 6')
                p.e('s_sub_u32 s52, s50, s52')
                p.e('s_mul_i32 s51, s51, 20')
                p.e('s_add_u32 s51, s51, s43')
                p.e('s_mul_i32 s51, s51, 12')
                p.e('s_lshl_b32 s52, s52, 1')
                p.e('s_add_u32 s51, s51, s52')
                p.e(f's_add_u32 s51, s51, {m}')
                sr = 24
            else:
                p.e('s_lshl_b32 s50, s46, 2')
                p.e(f's_add_u32 s50, s50, {t}')
                p.e('s_mul_hi_u32 s51, s50, 0x33333334')
                p.e('s_mul_i32 s52, s51, 5')
                p.e('s_sub_u32 s52, s50, s52')
                p.e('s_mul_i32 s51, s51, 48')
                p.e('s_add_u32 s51, s51, s45')
                p.e('s_mul_i32 s51, s51, 5')
                p.e('s_add_u32 s51, s51, s52')
                sr = 28
            p.e('s_lshl_b32 s51, s51, 10')
            p.e(wait_site(lgkm=True))
            r = 20 + (m * 4 + t) * 4
            p.e(f'buffer_store_dwordx4 v[{r}:{r + 3}], v16, s[{sr}:{sr + 3}], s51 offen')
    p.e('s_waitcnt vmcnt(0)')
    p.e(f's_mov_b32 s{sW}, s40')
    rt_end(p, 0, 'r')


LOW32 = 's_mov_b32 exec_hi, 0'
FULL = 's_mov_b32 exec_hi, -1'


def xreduce8(p, reg, tmp):
    p.e(f'v_mov_b32 v{tmp}, v{reg}')
    p.e('s_nop 1')
    p.e(f'v_add_f32_dpp v{reg}, v{tmp}, v{reg} row_ror:8 row_mask:0xf bank_mask:0xf')
    for sw in ('v_permlane16_swap_b32', 'v_permlane32_swap_b32'):
        p.e(f'v_mov_b32 v{tmp}, v{reg}')
        p.e('s_nop 1')
        p.e(f'{sw} v{tmp}, v{reg}')
        p.e(f'v_add_f32 v{reg}, v{tmp}, v{reg}')


def wg_row_sum(p, reg, tmp, vW, vRd, ldsoff, Q):
    xreduce8(p, reg, tmp)
    p.e(f'ds_write_b32 v{vW}, v{reg} offset:{ldsoff}')
    p.e('s_waitcnt lgkmcnt(0)')
    p.e('s_barrier')
    p.e(f'ds_read_b128 v[{Q}:{Q + 3}], v{vRd} offset:{ldsoff}')
    p.e('s_waitcnt lgkmcnt(0)')
    p.e(f'v_add_f32 v{Q}, v{Q}, v{Q + 1}')
    p.e(f'v_add_f32 v{Q + 2}, v{Q + 2}, v{Q + 3}')
    p.e(f'v_add_f32 v{reg}, v{Q}, v{Q + 2}')


def lane_sum(p, T, X, sq):
    for k in range(4):
        if sq:
            p.e(f'v_mul_f32 v{T + k}, v{X + k}, v{X + k}')
        else:
            p.e(f'v_add_f32 v{T + k}, v{X + k}, v{X + 4 + k}')
    for b in range(4 if sq else 8, 24, 4):
        if b == 16:
            p.e(LOW32)
        for k in range(4):
            if sq:
                p.e(f'v_fmac_f32 v{T + k}, v{X + b + k}, v{X + b + k}')
            else:
                p.e(f'v_add_f32 v{T + k}, v{X + b + k}, v{T + k}')
    p.e(FULL)
    p.e(f'v_add_f32 v{T}, v{T}, v{T + 1}')
    p.e(f'v_add_f32 v{T + 2}, v{T + 2}, v{T + 3}')
    p.e(f'v_add_f32 v{T}, v{T}, v{T + 2}')


def layernorm24(p, X, T, vW, vRd, ldsbase):
    lane_sum(p, T, X, False)
    wg_row_sum(p, T, T + 1, vW, vRd, ldsbase, T + 4)
    p.e(f'v_mul_f32 v{T}, {fbits(-1.0 / 640):#x}, v{T}')
    for k in range(24):
        p.e(f'v_add_f32 v{X + k}, v{T}, v{X + k}')
    lane_sum(p, T, X, True)
    wg_row_sum(p, T, T + 1, vW, vRd, ldsbase + 128, T + 4)
    p.e(f'v_mov_b32 v{T + 1}, {fbits(1e-5):#x}')
    p.e(f'v_fmac_f32 v{T + 1}, {fbits(1.0 / 640):#x}, v{T}')
    p.e(f'v_rsq_f32 v{T + 1}, v{T + 1}')
    p.e('s_nop 0')
    for k in range(24):
        p.e(f'v_mul_f32 v{X + k}, v{T + 1}, v{X + k}')


def ln_setup(p):
    p.e(f'v_and_b32 v1, 7, v{vLANE}')
    p.e(f'v_bfe_u32 v2, v{vLANE}, 3, 2')
    p.e(f'v_bfe_u32 v3, v{vLANE}, 5, 1')
    p.e(f's_and_b32 s{sTa}, s2, 1')
    p.e(f's_lshl_b32 s{sTa}, s{sTa}, 3')
    p.e(f'v_add_u32 v8, s{sTa}, v1')
    p.e(f's_lshr_b32 s{sTa}, s2, 1')
    p.e(f's_mul_i32 s{sRow}, s{sTa}, 20480')
    p.e(f's_mul_i32 s{sTa}, s{sW}, 5')
    p.e(f'v_add_u32 v5, s{sTa}, v3')
    p.e('v_lshl_add_u32 v4, v2, 4, v8')
    p.e('v_lshlrev_b32 v4, 4, v4')
    p.e('v_lshl_add_u32 v4, v5, 10, v4')
    p.e('v_lshlrev_b32 v7, 4, v1')
    p.e(f'v_add_u32 v7, {LDS_LN}, v7')
    p.e(f's_lshl_b32 s{sTa}, s{sW}, 2')
    p.e(f'v_add_u32 v6, s{sTa}, v7')


def slot_exec(p, sl):
    if sl == 2:
        p.e(LOW32)


sRow, sTa, sTb, sTc, sK0, sK1 = 92, 93, 94, 95, 100, 101
SL_X, SL_M, SL_A = 12, 16, 20


class PhaseB:
    XR, A0, B0, X, T = 16, 32, 56, 80, 108

    def setup(self, p):
        ln_setup(p)
        p.e(f's_movk_i32 s{sTa}, 1280')
        p.e(f'v_mul_lo_u32 v10, v8, s{sTa}')
        p.e('v_lshl_add_u32 v10, v5, 6, v10')
        p.e('v_lshl_add_u32 v10, v2, 4, v10')
        p.e('v_lshlrev_b32 v11, 7, v5')
        p.e('v_lshl_add_u32 v11, v2, 5, v11')

    def srds(self, p):
        srd(p, SL_X, PTR['x'], SZ_X)
        srd(p, SL_M, PTR['ws'], 15360, WS_MOD)
        srd(p, SL_A, PTR['ws'], SZ_ACT, WS_H)

    def body(self, p, hook=None):
        XR, A0, B0, X, T = self.XR, self.A0, self.B0, self.X, self.T
        for sl in range(3):
            slot_exec(p, sl)
            p.e(f'buffer_load_dwordx4 {v(XR + 4 * sl, 4)}, v10, s[{SL_X}:{SL_X + 3}], s{sRow} offen offset:{128 * sl}')
        p.e(FULL)
        p.e(f's_movk_i32 s{sTa}, 2560')
        for sl in range(3):
            slot_exec(p, sl)
            for h in range(2):
                p.e(f'buffer_load_dwordx4 {v(B0 + 8 * sl + 4 * h, 4)}, v11, s[{SL_M}:{SL_M + 3}], 0 offen offset:{256 * sl + 16 * h}')
                p.e(f'buffer_load_dwordx4 {v(A0 + 8 * sl + 4 * h, 4)}, v11, s[{SL_M}:{SL_M + 3}], s{sTa} offen offset:{256 * sl + 16 * h}')
        p.e(FULL)
        if hook:
            hook(p)
        p.e(wait_site(vm=True))
        for k in range(12):
            p.e(f'v_lshlrev_b32 v{X + 2 * k}, 16, v{XR + k}')
            p.e(f'v_and_b32 v{X + 2 * k + 1}, 0xffff0000, v{XR + k}')
        layernorm24(p, X, T, 6, 7, 0)
        p.e(wait_site(vm=True))
        p.e(f's_mov_b32 s{sTb}, {fbits(CS):#x}')
        for k in range(24):
            p.e(f'v_fma_f32 v{X + k}, v{X + k}, v{A0 + k}, v{B0 + k}')
        for k in range(24):
            p.e(f'v_mul_f32 v{X + k}, s{sTb}, v{X + k}')
        for k in range(12):
            p.e(f'v_cvt_pk_bf16_f32 v{XR + k}, v{X + 2 * k}, v{X + 2 * k + 1}')
        for sl in range(3):
            slot_exec(p, sl)
            if sl == 2:
                p.e(f's_add_u32 s{sRow}, s{sRow}, 4096')
            off = ' offset:2048' if sl == 1 else ''
            p.e(f'buffer_store_dwordx4 {v(XR + 4 * sl, 4)}, v4, s[{SL_A}:{SL_A + 3}], s{sRow} offen{off}{sc()}')
        p.e(FULL)


class PhaseE:
    NS = 8
    PR = 16
    XR = PR + 12 * NS
    GA = XR + 12
    A2 = GA + 24
    SB = A2 + 24
    X = SB + 24
    T = X + 24
    S_X, S_M, S_P = 20, 24, 84

    def setup(self, p):
        assert self.T % 4 == 0 and self.T + 9 <= 250
        ln_setup(p)
        p.e('v_lshlrev_b32 v9, 5, v5')
        p.e('v_lshl_add_u32 v9, v2, 2, v9')
        p.e('v_lshlrev_b32 v11, 2, v9')
        p.e(f's_movk_i32 s{sTa}, 1280')
        p.e(f'v_mul_lo_u32 v10, v8, s{sTa}')
        p.e('v_lshl_add_u32 v10, v9, 1, v10')

    def early_loads(self, p):
        XR, S_X, S_M = self.XR, self.S_X, self.S_M
        srd(p, S_X, PTR['x'], SZ_X)
        srd(p, S_M, PTR['ws'], 15360, WS_MOD)
        for sl in range(3):
            slot_exec(p, sl)
            for h in range(2):
                p.e(f'buffer_load_dwordx2 {vv(XR + 4 * sl + 2 * h, 2)}, v10, s[{S_X}:{S_X + 3}], s{sRow} offen offset:{128 * sl + 32 * h}')
        p.e(FULL)
        for dst, seg in ((self.GA, 2), (self.A2, 4), (self.SB, 3)):
            p.e(f's_movk_i32 s{sTa}, {seg * 2560}')
            for sl in range(3):
                slot_exec(p, sl)
                for h in range(2):
                    p.e(f'buffer_load_dwordx4 {vv(dst + 8 * sl + 4 * h, 4)}, v11, s[{S_M}:{S_M + 3}], s{sTa} offen offset:{256 * sl + 64 * h}')
            p.e(FULL)

    def body(self, p, late=False):
        PR, XR, GA, A2, SB, X, T, NS, S_P = self.PR, self.XR, self.GA, self.A2, self.SB, self.X, self.T, self.NS, self.S_P
        srd(p, S_P, PTR['ws'], SZ_ACT * NS, WS_PART)
        p.e(f's_mov_b32 s{sTa}, s{sRow}')
        p.e(f's_add_u32 s{sTb}, s{sRow}, 4096')
        for sp in range(NS):
            p.e(f'buffer_load_dwordx4 {vv(PR + (sp * 3 + 0) * 4, 4)}, v4, s[{S_P}:{S_P + 3}], s{sTa} offen{sc()}')
            p.e(f'buffer_load_dwordx4 {vv(PR + (sp * 3 + 1) * 4, 4)}, v4, s[{S_P}:{S_P + 3}], s{sTa} offen offset:2048{sc()}')
            p.e(LOW32)
            p.e(f'buffer_load_dwordx4 {vv(PR + (sp * 3 + 2) * 4, 4)}, v4, s[{S_P}:{S_P + 3}], s{sTb} offen{sc()}')
            p.e(FULL)
            if sp < NS - 1:
                p.e(f's_add_u32 s{sTa}, s{sTa}, {SZ_ACT}')
                p.e(f's_add_u32 s{sTb}, s{sTb}, {SZ_ACT}')
        if late:
            self.early_loads(p)
        p.e(f's_mov_b32 s{sK0}, 0x3f80')
        p.e(f's_mov_b32 s{sK1}, 0x3f800000')
        zero_v(p, X, X + 24)
        for sp in range(NS):
            p.e(wait_site(vm=True))
            for k in range(12):
                r = PR + sp * 12 + k
                p.e(f'v_dot2c_f32_bf16 {vv(X + 2 * k)}, s{sK0}, {vv(r)}')
                p.e(f'v_dot2c_f32_bf16 {vv(X + 2 * k + 1)}, s{sK1}, {vv(r)}')
        p.e(wait_site(vm=True))
        for k in range(12):
            r = XR + k
            lo, hi = X + 2 * k, X + 2 * k + 1
            p.e(f'v_lshlrev_b32 v{T}, 16, {vv(r)}')
            p.e(f'v_and_b32 v{T + 1}, 0xffff0000, {vv(r)}')
            p.e(f'v_fma_f32 {vv(lo)}, {vv(lo)}, {vv(GA + 2 * k)}, v{T}')
            p.e(f'v_fma_f32 {vv(hi)}, {vv(hi)}, {vv(GA + 2 * k + 1)}, v{T + 1}')
            p.e(f'v_cvt_pk_bf16_f32 {vv(r)}, {vv(lo)}, {vv(hi)}')
            p.e(f'v_lshlrev_b32 {vv(lo)}, 16, {vv(r)}')
            p.e(f'v_and_b32 {vv(hi)}, 0xffff0000, {vv(r)}')
        S_O = self.S_X
        srd(p, S_O, PTR['ws'], SZ_ACT, WS_X1)
        p.e(f's_add_u32 s{sTb}, s{sRow}, 4096')
        p.e(f'buffer_store_dwordx4 {vv(XR, 4)}, v4, s[{S_O}:{S_O + 3}], s{sRow} offen{sc()}')
        p.e(f'buffer_store_dwordx4 {vv(XR + 4, 4)}, v4, s[{S_O}:{S_O + 3}], s{sRow} offen offset:2048{sc()}')
        p.e(LOW32)
        p.e(f'buffer_store_dwordx4 {vv(XR + 8, 4)}, v4, s[{S_O}:{S_O + 3}], s{sTb} offen{sc()}')
        p.e(FULL)
        layernorm24(p, X, T, 6, 7, 0)
        p.e(wait_site(vm=True))
        for k in range(24):
            p.e(f'v_fma_f32 {vv(X + k)}, {vv(X + k)}, {vv(A2 + k)}, {vv(SB + k)}')
        for k in range(12):
            p.e(f'v_cvt_pk_bf16_f32 {vv(PR + k)}, {vv(X + 2 * k)}, {vv(X + 2 * k + 1)}')
        S_O = self.S_P
        srd(p, S_O, PTR['ws'], SZ_ACT, WS_H2)
        p.e(f'buffer_store_dwordx4 {vv(PR, 4)}, v4, s[{S_O}:{S_O + 3}], s{sRow} offen{sc()}')
        p.e(f'buffer_store_dwordx4 {vv(PR + 4, 4)}, v4, s[{S_O}:{S_O + 3}], s{sRow} offen offset:2048{sc()}')
        p.e(LOW32)
        p.e(f'buffer_store_dwordx4 {vv(PR + 8, 4)}, v4, s[{S_O}:{S_O + 3}], s{sTb} offen{sc()}')
        p.e(FULL)


def vv(r, n=1):
    assert r + n <= 256, 'register above v255'
    return v(r, n)
```

```python
import sys
from common import *
import gen_small, gen_fused

HEADER = open('adaLN_cond__sliding_block_cached__glu_gated_swiglu__prompt.s.ref').read().split('; Override launch')[0]

def assemble(kernels, path):
    out = [HEADER.rstrip()]
    for name, p, grid, block, lds, vg, ac in kernels:
        out.append(f'; @launch kernel={name} grid=({grid},1,1) block=({block},1,1) lds={lds}')
    out.append('.amdgcn_target "amdgcn-amd-amdhsa--gfx950"')
    out.append('.text')
    for name, p, *_ in kernels:
        out.append(p.text())
    out.append('.section .rodata,"a"')
    for name, p, grid, block, lds, vg, ac in kernels:
        out.append(kernel_desc(name, vg, ac))
    open(path, 'w').write('\n'.join(out) + '\n')

def chk(r):
    assert not r[1], r[1][:5]
    return r

def all_kernels():
    ks = []
    p, _ = chk(gen_small.gen_a('pha_kernel')); ks.append(('pha_kernel', p, 240, 256, 49152, 128, 128))
    p, _ = chk(gen_fused.gen_k1('main_kernel')); ks.append(('main_kernel', p, 256, 256, LDS_TOTAL, 512, 256))
    return ks

if __name__ == '__main__':
    for a_ in sys.argv[1:]:
        k_, v_ = a_.split('=')
        OPT[k_] = int(v_)
    assemble(all_kernels(), 'full.s')
    RT['on'] = True
    sets = {
        'a': ['b_start', 'b_body', 'b_drained', 'b_bar', 'b_polled', 'c_enter', 'c_p1', 'c_trans', 'c_att', 'c_epi', 'c_drained', 'c_bar', 'c_polled'],
        'b': ['c_att', 'c_bar', 'c_polled', 'd_main', 'd_epi', 'd_drained', 'd_bar', 'd_polled', 'e_body', 'e_drained', 'e_bar', 'e_polled', 'f_main'],
        'c': ['e_bar', 'e_polled', 'f_main', 'f_epi', 'f_drained', 'f_bar', 'f_polled', 'g_main', 'g_epi'],
    }
    import json
    for k, names in sets.items():
        MK.clear()
        MK.update({n: i for i, n in enumerate(names)})
        assemble(all_kernels(), f'full_rt_{k}.s')
    json.dump(sets, open('marks.json', 'w'))
    print('ok')
```
